```python
import torch

def _softmax(x, axis=-1):
    return torch.softmax(x, dim=axis)
def _gelu(x):
    return torch.nn.functional.gelu(x, approximate="tanh")
def _silu(x):
    return torch.nn.functional.silu(x)
def _sigmoid(x):
    return torch.sigmoid(x)
def _layernorm(x, axis=-1, eps=1e-5):
    m = x.mean(dim=axis, keepdim=True)
    v = x.var(dim=axis, keepdim=True, unbiased=False)
    return (x - m) / torch.sqrt(v + eps)
def _scatter_add(tgt, idx, src, axis=0):
    return tgt.clone().index_add_(axis, idx, src)
def _segment_sum(src, seg, n):
    out = torch.zeros((n,) + src.shape[1:], dtype=src.dtype)
    return out.index_add_(0, seg, src)
def _pad(x, pw):
    flat = tuple(v for pair in reversed(pw) for v in pair)
    return torch.nn.functional.pad(x, flat)

kernel_name = 'interleave_layers__grouped_kv_mqa__moe_arch_mod__prompt'

def setup_inputs():

    _w = (lambda a: (lambda t: t.to(torch.bfloat16) if t.is_floating_point() else t)(torch.as_tensor(a)))
    def _A_setup():
        B, S, D, H = 1, 2048, 576, 32
        Dh = D // H
        return {
            "x": _w((lambda *s: torch.randn(*s, dtype=torch.bfloat16) * 0.05)(B, S, D)),
            "wq": _w((lambda *s: torch.randn(*s, dtype=torch.bfloat16) * 0.05)(D, H * Dh)),
            "wk": _w((lambda *s: torch.randn(*s, dtype=torch.bfloat16) * 0.05)(D, Dh)),
            "wv": _w((lambda *s: torch.randn(*s, dtype=torch.bfloat16) * 0.05)(D, Dh)),
            "wo": _w((lambda *s: torch.randn(*s, dtype=torch.bfloat16) * 0.05)(H * Dh, D)),
        }
    _A_in = _A_setup()

    def _B_setup():
        B, S, D, F, C = 1, 2048, 576, 4608, 1
        return {
            "x": _w((lambda *s: torch.randn(*s, dtype=torch.bfloat16) * 0.05)(B, S, D)),
            "w_r": _w((lambda *s: torch.randn(*s, dtype=torch.bfloat16) * 0.05)(D)),
            "w_gate": _w((lambda *s: torch.randn(*s, dtype=torch.bfloat16) * 0.05)(D, F)),
            "w_up": _w((lambda *s: torch.randn(*s, dtype=torch.bfloat16) * 0.05)(D, F)),
            "w_down": _w((lambda *s: torch.randn(*s, dtype=torch.bfloat16) * 0.05)(F, D)),
        }
    _B_in = _B_setup()

    return {
        "A_x": _A_in["x"],
        "A_wq": _A_in["wq"],
        "A_wk": _A_in["wk"],
        "A_wv": _A_in["wv"],
        "A_wo": _A_in["wo"],
        "B_x": _B_in["x"],
        "B_w_r": _B_in["w_r"],
        "B_w_gate": _B_in["w_gate"],
        "B_w_up": _B_in["w_up"],
        "B_w_down": _B_in["w_down"],
    }

def reference(A_x, A_wq, A_wk, A_wv, A_wo, B_x, B_w_r, B_w_gate, B_w_up, B_w_down):
    def _A_ref(x, wq, wk, wv, wo):
        B, S, D = x.shape
        H = 32
        Dh = D // H
        q = (lambda x, *d: x.permute(*d))((x @ wq).reshape(B, S, H, Dh), 0, 2, 1, 3)
        k = x @ wk
        v = x @ wv
        scores = torch.einsum("bhqd,bkd->bhqk", q, k) * (Dh ** -0.5)
        p = _softmax(scores, axis=-1)
        o = torch.einsum("bhqk,bkd->bhqd", p, v)
        return (lambda x, *d: x.permute(*d))(o, 0, 2, 1, 3).reshape(B, S, H * Dh) @ wo

    def _B_ref(x, w_r, w_gate, w_up, w_down):
        B, S, D = x.shape
        C = 1
        r = x @ w_r
        idx = torch.argsort(-r, axis=-1)[:, :C]
        idx_e = (lambda x, n, axis: torch.repeat_interleave(x, n, dim=axis))(idx.reshape(B, C, 1), D, axis=2)
        x_sel = (lambda x, i, axis: torch.take_along_dim(x, i, dim=axis))(x, idx_e, axis=1)
        g = _silu(x_sel @ w_gate)
        u = x_sel @ w_up
        y = (g * u) @ w_down
        r_sel = _sigmoid((lambda x, i, axis: torch.take_along_dim(x, i, dim=axis))(r, idx, axis=1))
        y = y * r_sel.reshape(B, C, 1)
        b_off = (torch.arange(B) * S).reshape(B, 1)
        flat_idx = (idx + b_off).reshape(B * C)
        zero = (x * 0.0).reshape(B * S, D)
        upd = _scatter_add(zero, flat_idx, y.reshape(B * C, D), axis=0)
        return x + upd.reshape(B, S, D)

    x = A_x
    x = x + _A_ref(_layernorm(x, axis=-1), A_wq, A_wk, A_wv, A_wo)
    x = x + _B_ref(_layernorm(x, axis=-1), B_w_r, B_w_gate, B_w_up, B_w_down)
    x = x + _A_ref(_layernorm(x, axis=-1), A_wq, A_wk, A_wv, A_wo)
    x = x + _B_ref(_layernorm(x, axis=-1), B_w_r, B_w_gate, B_w_up, B_w_down)
    return x
```

```python
import re, struct

def v(n, cnt=1): return f"v{n}" if cnt == 1 else f"v[{n}:{n+cnt-1}]"
def s(n, cnt=1): return f"s{n}" if cnt == 1 else f"s[{n}:{n+cnt-1}]"
def f32bits(x): return "0x%08x" % struct.unpack("<I", struct.pack("<f", x))[0]
DPP_ALL = "row_mask:0xf bank_mask:0xf"

_REG = re.compile(r"^(-|\|)?\|?([vs])(\d+)\|?$|^(-)?([vs])\[(\d+):(\d+)\]$")
def regs(op):
    op = op.strip()
    if op in ("vcc",): return {"vcc_lo", "vcc_hi"}
    if op in ("vcc_lo", "vcc_hi", "m0", "exec_lo", "exec_hi", "scc"): return {op}
    if op == "exec": return {"exec_lo", "exec_hi"}
    op2 = op.replace("|", "").lstrip("-")
    m = re.match(r"^([vs])(\d+)$", op2)
    if m: return {m.group(1) + m.group(2)}
    m = re.match(r"^([vs])\[(\d+):(\d+)\]$", op2)
    if m: return {m.group(1) + str(i) for i in range(int(m.group(2)), int(m.group(3)) + 1)}
    return set()

TRANS = ("v_exp_", "v_log_", "v_rcp_", "v_rsq_", "v_sqrt_", "v_sin_", "v_cos_")
def mfma_passes(op):
    if "_2b_" in op: return 16
    if "_4b_" in op: return 8
    if "_16b_" in op: return 2
    if "32x32" in op: return 8
    return 4

class I:
    def __init__(self, text):
        self.text = text
        t = text.split(";")[0].strip()
        parts = t.split(None, 1)
        self.op = parts[0]
        rest = parts[1] if len(parts) > 1 else ""
        rest = re.sub(r"(quad_perm|op_sel|op_sel_hi|neg_lo|neg_hi):\[([^\]]*)\]", lambda m: m.group(1) + ":" + m.group(2).replace(",", "_"), rest)
        rest = re.sub(r"hwreg\([^)]*\)", "hwreg", rest)
        ops = [o.strip() for o in rest.split(",")]
        if ops:
            last = ops[-1].split()
            self.mods = last[1:]
            ops[-1] = last[0] if last else ""
        self.ops = ops
        op = self.op
        self.valu = op.startswith("v_")
        self.mfma = op.startswith("v_mfma") or op.startswith("v_smfmac")
        self.salu = op.startswith("s_")
        self.vmem = op.startswith(("buffer_", "global_"))
        self.ds = op.startswith("ds_")
        self.trans = op.startswith(TRANS)
        self.dot = op.startswith("v_dot")
        self.dpp = "_dpp" in op
        self.perml = op.startswith("v_permlane")
        self.rdlane = op.startswith(("v_readlane", "v_readfirstlane"))
        self.ldsdma = self.vmem and ("lds" in self.mods or "load_lds" in op)
        self.W = set(); self.R = set(); self.data = set()
        R = [regs(o) for o in ops]
        if self.mfma:
            self.W = R[0]; self.A = R[1] | R[2]; self.C = R[3]; self.R = self.A | self.C; self.passes = mfma_passes(op)
        elif self.valu:
            nd = 1
            if re.match(r"v_(add|sub|subrev|addc|subb|subbrev)_co_", op) or op.startswith(("v_div_scale", "v_mad_u64", "v_mad_i64")): nd = 2
            if op == "v_nop": nd = 0
            for r in R[:nd]: self.W |= r
            for r in R[nd:]: self.R |= r
            if self.perml and "swap" in op:
                self.W = R[0] | R[1]; self.R = R[0] | R[1]
            if op.startswith(("v_fmac", "v_dot2c", "v_mac", "v_writelane")) or self.dpp or "sdwa" in op: self.R |= R[0]
            if op.startswith("v_cmpx"): self.W |= {"exec_lo", "exec_hi"}
            if self.dot:
                self.C = R[0] if op.startswith("v_dot2c") else R[3]
                self.A = R[1] | R[2]
        elif self.vmem:
            if self.ldsdma:
                for r in R: self.R |= r
                self.R |= {"m0"}
            elif "_load" in op:
                self.W = R[0]
                for r in R[1:]: self.R |= r
                if "d16" in op: self.R |= R[0]
            else:
                for r in R: self.R |= r
                di = 1 if op.startswith("global_") else 0
                if "atomic" in op and "sc0" in self.mods:
                    self.W = R[0]
                if op.endswith(("x3", "x4")): self.data = R[di]
        elif self.ds:
            if "read" in op or "permute" in op or "swizzle" in op or "rtn" in op:
                self.W = R[0]
                for r in R[1:]: self.R |= r
            else:
                for r in R: self.R |= r
        elif self.salu:
            if op.startswith(("s_cmp", "s_bitcmp", "s_cbranch", "s_branch", "s_waitcnt", "s_nop", "s_barrier", "s_endpgm", "s_setprio", "s_sleep", "s_setpc")):
                for r in R: self.R |= r
            else:
                self.W = R[0] if R else set()
                for r in R[1:]: self.R |= r
                if "saveexec" in op: self.W |= {"exec_lo", "exec_hi"}
        self.states = 1
        if op == "s_nop": self.states = int(ops[0], 0) + 1

def isv(x): return x[0] == "v" and x[1:].isdigit()
def need(p, c):
    n = 0
    if p.mfma:
        ps = {2: 0, 4: 1, 8: 2, 16: 3}[p.passes]
        if c.mfma:
            if p.W & c.A: n = max(n, (5, 8, 12, 20)[ps])
            if p.W & c.C:
                if p.W == c.C and p.passes == c.passes: n = max(n, (2, 0, 0, 0)[ps])
                else: n = max(n, (4, 6, 10, 18)[ps])
            elif p.W & c.W and p.passes > c.passes: n = max(n, (4, 6, 10, 18)[ps])
        elif c.valu or c.vmem or c.ds:
            if p.W & (c.R | c.W): n = max(n, (5, 8, 12, 20)[ps])
            if c.valu and (p.C & c.W): n = max(n, (1, 3, 7, 15)[ps])
        return n
    if p.valu:
        wv = {x for x in p.W if isv(x)}
        ws = p.W - wv
        if c.mfma and (wv & c.R): n = max(n, 2)
        if c.mfma and ({"exec_lo", "exec_hi"} & ws): n = max(n, 4)
        if p.dot and (c.valu or c.vmem or c.ds):
            if c.op == p.op:
                if wv & c.A: n = max(n, 3)
            elif wv & (c.R | c.W): n = max(n, 3)
        if c.vmem and (ws & c.R): n = max(n, 5)
        if c.valu:
            if c.dpp and (wv & c.R): n = max(n, 2)
            if c.perml and (wv & c.R): n = max(n, 2)
            if c.rdlane and (wv & c.R): n = max(n, 1)
            if ws & c.R: n = max(n, 4 if c.op.startswith(("v_readlane", "v_writelane")) else 2)
            if p.trans and not c.trans and (wv & c.R): n = max(n, 1)
            if ("sdwa" in p.op or any("op_sel" in m for m in p.mods)) and (wv & (c.R | c.W)): n = max(n, 1)
    if p.salu and "m0" in p.W and c.ldsdma: n = max(n, 1)
    if p.vmem and p.data and (p.data & c.W): n = max(n, 2 if c.valu else 1)
    return n

class Kern:
    TS = False
    NTS = 14
    def __init__(self, name, nvgpr, nsgpr=96):
        self.name = name; self.nvgpr = nvgpr; self.nsgpr = nsgpr
        self.lines = []; self._uid = 0
    def __call__(self, txt):
        for ln in txt.split("\n"):
            ln = ln.strip()
            if ln: self.lines.append(ln)
    def c(self, t): self.lines.append("; " + t)
    def L(self, l): return f"L_{l}"
    def label(self, l): self.lines.append(f"{self.L(l)}:")
    def uid(self, base):
        self._uid += 1
        return f"{base}{self._uid}"
    def align(self, p): self.lines.append(f".p2align {p}")
    def srd(self, d, base, size):
        self(f"s_mov_b32 s{d}, s{base}\ns_mov_b32 s{d+1}, s{base+1}\ns_mov_b32 s{d+2}, {size}\ns_mov_b32 s{d+3}, 0x00020000")
    def pad(self, verbose=None):
        items = []
        for l in self.lines:
            if l.startswith(";") or l.startswith("."): items.append(l)
            elif l.endswith(":"): items.append(l)
            else: items.append(I(l))
        def build():
            lab = {it[:-1]: i for i, it in enumerate(items) if isinstance(it, str) and it.endswith(":")}
            br = {}
            for i, it in enumerate(items):
                if isinstance(it, I) and it.op.startswith(("s_branch", "s_cbranch")):
                    br.setdefault(lab[it.ops[0]], []).append(i)
            return br
        br = build()
        i = 0; ins = 0
        while i < len(items):
            c = items[i]
            if isinstance(c, I) and (c.valu or c.vmem or c.ds):
                worst = 0
                stack = [(i - 1, 0)]; seen = {}
                while stack:
                    k, d = stack.pop()
                    while k >= 0 and d < 20:
                        if seen.get(k, 99) <= d: break
                        seen[k] = d
                        p = items[k]
                        if isinstance(p, str):
                            if k in br:
                                for b in br[k]: stack.append((b, d))
                            k -= 1
                            q = items[k] if k >= 0 else None
                            kk = k
                            while kk >= 0 and isinstance(items[kk], str) and not items[kk].endswith(":"): kk -= 1
                            if kk >= 0 and isinstance(items[kk], I) and items[kk].op in ("s_branch", "s_endpgm"): break
                            continue
                        worst = max(worst, need(p, c) - d)
                        d += p.states
                        k -= 1
                if worst > 0:
                    if verbose: verbose(i, c.text, worst)
                    w = worst
                    while w > 0:
                        n = min(w, 16)
                        items.insert(i, I(f"s_nop {n-1}")); i += 1; w -= n; ins += 1
                    br = build()
            i += 1
        self.lines = [x if isinstance(x, str) else x.text for x in items]
        return ins
    def body(self):
        out = [f".globl {self.name}", ".p2align 8", f".type {self.name},@function", f"{self.name}:"]
        for l in self.lines:
            out.append(l if (l.endswith(":") or l.startswith(".")) else "    " + l)
        return "\n".join(out) + "\n"
    def desc(self):
        acc = min(256, (self.nvgpr + 3) // 4 * 4)
        return f""".p2align 6
.amdhsa_kernel {self.name}
  .amdhsa_next_free_vgpr {self.nvgpr}
  .amdhsa_next_free_sgpr {self.nsgpr}
  .amdhsa_accum_offset {acc}
  .amdhsa_group_segment_fixed_size 0
  .amdhsa_kernarg_size 104
  .amdhsa_user_sgpr_count 2
  .amdhsa_user_sgpr_kernarg_segment_ptr 1
  .amdhsa_system_sgpr_workgroup_id_x 1
.end_amdhsa_kernel
"""

def red16(k, op, *rs):
    for ctl in ("quad_perm:[1,0,3,2]", "quad_perm:[2,3,0,1]", "row_half_mirror", "row_mirror"):
        for r in rs: k(f"{op}_dpp {v(r)}, {v(r)}, {v(r)} {ctl} {DPP_ALL}")
def red8(k, op, *rs):
    for ctl in ("quad_perm:[1,0,3,2]", "quad_perm:[2,3,0,1]", "row_half_mirror"):
        for r in rs: k(f"{op}_dpp {v(r)}, {v(r)}, {v(r)} {ctl} {DPP_ALL}")
def redx(k, op, rs, ts):
    for sw in ("v_permlane16_swap_b32", "v_permlane32_swap_b32"):
        for r, t in zip(rs, ts): k(f"v_mov_b32 {v(t)}, {v(r)}")
        for r, t in zip(rs, ts): k(f"{sw} {v(r)}, {v(t)}")
        for r, t in zip(rs, ts): k(f"{op} {v(r)}, {v(r)}, {v(t)}")
```

```python
import sys, math
from asm2 import *

D = 576
ROWB = 1152
XB = 2048 * ROWB
EPS = 1e-5
QSCALE = math.log2(math.e) / math.sqrt(18)
QUAD, SUPER = 9472, 18944
L_W4, L_W5B, RING = 0, 73728, 82944
L_W5A = RING + 2 * SUPER
L_WO5 = L_W5A + 9216
L_QST = RING + 3 * SUPER
L_RED = RING + 36864
REDW = 2432
STG = 158720
L_SYNC, L_CS, L_WRS, L_SW, L_TOK, L_FT = STG, STG + 256, STG + 576, STG + 736, STG + 768, STG + 1792
PROG, RST1, FULL, F0, WF, W5A, W5B_, WO5, WOE, WOL, QRDY = 0, 8, 11, 12, 16, 20, 21, 22, 23, 24, 28
CSF, RST0, TOKF, OPD, SEL0 = 32, 37, 38, 42, 46
BIG = 64
W_KV, KVS = 0, 0x28000
W_FL, FLS = 0x50000, 0x2000
W_KEY, KEYS = 0x54000, 0x200
W_GRP, GB = 0x100000, 311296
TS_ = 18432
G_OX, G_XX, G_ST = 0, 147456, 294912
W_GLB = 0xB00000
YPS = 36 * 576 * 64
W_YP = W_GLB
W_X2R = W_GLB + 2 * YPS
W_QS = W_X2R + 2048
W_PF = W_QS + 2048
W_SP = W_PF + 1024
WS_SIZE = 0x1000000
OOB = 0x7f000000
FLC = 0x9E3779B9
sW, sG, sJ, sT, sC = 3, 4, 5, 6, 7
P_X, P_WQ, P_WK, P_WV, P_WO, P_WR, P_WG, P_WU, P_WD, P_OUT, P_DBG, P_WS = 8, 10, 12, 14, 16, 20, 22, 24, 26, 28, 30, 32
sBUD, sL = 34, 35
WS, RX, RWQ, RWO, ROUT, RWR, RWD = "s[36:39]", "s[40:43]", "s[44:47]", "s[48:51]", "s[52:55]", "s[56:59]", "s[60:63]"
sJ144, sGRP, sTIL, sSEL, sROT, sTHR, sLIVE, sNEED, sPRG, sX = 64, 65, 66, 67, 68, 69, 70, 71, 72, 73
BUDGET = 2000000
OPT = set()

class G(Kern):
    def ts(self, i):
        if Kern.TS:
            self("s_memrealtime s[100:101]\ns_waitcnt lgkmcnt(0)")
            self(f"s_mov_b32 s{80+i}, s100")
    def tscopy(self):
        if Kern.TS and "tss" not in OPT:
            for i in range(2, 9): self(f"s_mov_b32 s{87+i}, s{80+i}")
    def tss(self, i):
        if "tss" in OPT: self.ts(i)
    def post(self, word, val, vt, dyn=None):
        self(f"v_mov_b32 v{vt}, {val}")
        if dyn is None:
            self(f"s_lshl_b64 exec, 1, {word}")
        else:
            self(f"s_add_u32 s79, s{dyn}, {word}\ns_lshl_b64 exec, 1, s79")
        self(f"ds_write_b32 v1, v{vt}\ns_mov_b64 exec, -1")
    def wait(self, words, val, vt, sleep=0, smask=None, hi=None):
        if smask is None:
            hi = words[0] >= 32
            assert all((w >= 32) == hi for w in words)
            m = hex(sum(1 << (w & 31) for w in words))
        else:
            m = f"s{smask}"
        a, b = self.uid("w"), self.uid("wd")
        self.label(a)
        self(f"ds_read_b32 v{vt}, v1\ns_waitcnt lgkmcnt(0)\nv_cmp_gt_u32 vcc, {val}, v{vt}")
        self(f"s_and_b32 s79, {'vcc_hi' if hi else 'vcc_lo'}, {m}\ns_cbranch_scc0 {self.L(b)}")
        if sleep: self(f"s_sleep {sleep}")
        self(f"s_sub_i32 s{sBUD}, s{sBUD}, {1 + 4 * sleep}\ns_cmp_gt_i32 s{sBUD}, 0\ns_cbranch_scc1 {self.L(a)}")
        self.label(b)
    def retry(self, lab, sleep=0):
        b = self.uid("rd")
        self(f"s_cbranch_vccz {self.L(b)}")
        if sleep: self(f"s_sleep {sleep}")
        self(f"s_sub_i32 s{sBUD}, s{sBUD}, 16\ns_cmp_gt_i32 s{sBUD}, 0\ns_cbranch_scc1 {self.L(lab)}")
        self.label(b)
    def umax(self, dst, rs):
        rs = list(rs)
        if len(rs) == 1: self(f"v_mov_b32 v{dst}, v{rs[0]}"); return
        if len(rs) == 2: self(f"v_max_u32 v{dst}, v{rs[0]}, v{rs[1]}"); return
        self(f"v_max3_u32 v{dst}, v{rs[0]}, v{rs[1]}, v{rs[2]}")
        rs = rs[3:]
        while rs:
            if len(rs) == 1: self(f"v_max_u32 v{dst}, v{dst}, v{rs[0]}"); rs = []
            else: self(f"v_max3_u32 v{dst}, v{dst}, v{rs[0]}, v{rs[1]}"); rs = rs[2:]
    def br(self, cond, lab): self(f"s_cbranch_{cond} {self.L(lab)}")
    def jmp(self, lab): self(f"s_branch {self.L(lab)}")

def rng(a, n): return list(range(a, a + n))
def MF16(acc, a, b, c=None): return f"v_mfma_f32_16x16x32_bf16 {v(acc,4)}, {v(a,4)}, {v(b,4)}, " + (v(acc, 4) if c is None else c)
def M32(acc, a, b, c=None): return f"v_mfma_f32_32x32x16_bf16 {v(acc,16)}, {v(a,4)}, {v(b,4)}, " + (v(acc, 16) if c is None else c)
def M8(acc, a, b): return f"v_mfma_f32_32x32x8_bf16 {v(acc,16)}, {v(a,2)}, {v(b,2)}, {v(acc,16)}"
def M2B(acc, a, b): return f"v_mfma_f32_32x32x4_2b_bf16 {v(acc,32)}, {v(a,2)}, {v(b,2)}, 0"
def TR(dst, a, off): return f"ds_read_b64_tr_b16 {v(dst,2)}, v{a} offset:{off}\nds_read_b64_tr_b16 {v(dst+2,2)}, v{a} offset:{off+512}"

def tr_addr(k, dst, base, t):
    k(f"""v_and_b32 v{dst}, 0x300, v0
    v_lshlrev_b32 v{dst}, 2, v{dst}
    v_and_b32 v{t}, 0xc0, v0
    v_lshl_add_u32 v{dst}, v{t}, 1, v{dst}
    v_bfe_u32 v{t}, v0, 4, 2
    v_lshl_add_u32 v{dst}, v{t}, 3, v{dst}
    v_lshrrev_b32 v{t}, 2, v0
    v_and_b32 v{t}, 0x60, v{t}
    v_add_u32 v{dst}, v{dst}, v{t}""")
    if base: k(f"v_add_u32 v{dst}, {base}, v{dst}")

def dma_col(k, dst, t):
    k(f"""v_lshrrev_b32 v{t}, 3, v0
    v_and_b32 v{t}, 0x20, v{t}
    v_and_b32 v{dst}, 0x70, v0
    v_xor_b32 v{dst}, v{dst}, v{t}""")

def wo_setup(k, va, vb, vc, t):
    dma_col(k, vc, t)
    k(f"""v_lshrrev_b32 v{t}, 7, v0
    v_mul_u32_u24 v{va}, {ROWB}, v{t}
    v_add_u32 v{va}, v{va}, v{vc}
    v_xor_b32 v{vb}, 64, v{va}
    v_lshrrev_b32 v{t}, 8, v0
    v_mul_u32_u24 v{t}, {18*ROWB}, v{t}
    v_add_u32 v{vc}, v{vc}, v{t}
    v_bfe_u32 v{t}, v0, 7, 1
    v_mul_u32_u24 v{t}, {ROWB}, v{t}
    v_add3_u32 v{vc}, v{vc}, v{t}, 0
    v_add_u32 v{vc}, {16*ROWB}, v{vc}""")
def wo_dma(k, va, vb, vc, sso, sm0):
    for i in range(9):
        ro = ((i >> 1) * 18 + 8 * (i & 1)) * ROWB if i < 8 else 0
        k(f"s_add_u32 m0, s{sm0}, {1024*i}\ns_add_u32 s79, s{sso}, {ro}")
        k(f"buffer_load_dwordx4 v{(va, vb)[i & 1] if i < 8 else vc}, {RWO}, s79 offen lds")

def stats_fin(k, s1, s2):
    k(f"""v_mul_f32 v{s1}, {f32bits(1.0/D)}, v{s1}
    v_mul_f32 v{s2}, {f32bits(1.0/D)}, v{s2}
    v_fma_f32 v{s2}, -v{s1}, v{s1}, v{s2}
    v_max_f32 v{s2}, 0, v{s2}""")

B0, SL, ACC, RES = 8, 80, 108, 132
def b_loads(k, s0, s1=18):
    for st in range(s0, s1):
        k(f"buffer_load_dwordx4 {v(B0+4*st,4)}, v0, {WS}, s{74 + st // 4} offen offset:{1024*(st%4)} sc1")
def b_bases(k, off):
    for q in range(1, 5): k(f"s_add_u32 s{74+q}, s74, {4096*q}")

def gemm(k, kind, pre_issued=0, mid=None):
    items = []
    for st in range(18):
        for t in range(4):
            items.append((st, ('l', 2 + t, (st if st < 16 else st - 2) * 4096), ACC + 4 * t))
        if kind == "qkv":
            items.append((st, ('r', RES + 4 * st) if st < 9 else ('l', 6, (st - 9) * 1024), ACC + 16))
        else:
            items.append((st, ('r', RES + 4 * (st >> 1)), ACC + 16 + 4 * (st & 1)))
    lds = [i for i, it in enumerate(items) if it[1][0] == 'l']
    slot = {i: SL + 4 * (n % 7) for n, i in enumerate(lds)}
    cps = {6: ([WF, WF+1, WF+2, WF+3, W5B_], 2), 12: ([WF, WF+1, WF+2, WF+3], 3)} if kind == "qkv" else {9: (rng(WOL, 4), f"s{sNEED}")}
    state = dict(n=0, drained=0)
    def issue():
        n = state['n']
        if n >= len(lds): return
        it = items[lds[n]]
        first = n == 0 or items[lds[n-1]][0] != it[0]
        if first and it[0] in cps:
            k.wait(cps[it[0]][0], cps[it[0]][1], 7)
            state['drained'] = n
        if first and it[0] == 16:
            for t in range(4): k(f"v_add_u32 v{2+t}, 8192, v{2+t}")
        k(TR(slot[lds[n]], it[1][1], it[1][2]))
        state['n'] = n + 1
    for _ in range(pre_issued): issue()
    if mid: mid()
    while state['n'] < 7: issue()
    stubs = []
    for i, (st, src, acc) in enumerate(items):
        if i % 15 == 0:
            q = i // 15
            lab = k.uid(kind + "g"); stub = k.uid(kind + "r")
            k(f"s_waitcnt vmcnt({15 - 3*q})")
            k.umax(7, rng(B0 + 12 * q, 12))
            k(f"v_cmp_lt_u32 vcc, s{sTHR}, v7")
            k.br("vccnz", stub)
            k.label(lab)
            stubs.append((stub, lab, 3 * q))
        if src[0] == 'l':
            n = lds.index(i)
            if n >= state['drained']:
                k(f"s_waitcnt lgkmcnt({2 * (state['n'] - 1 - n)})")
            a = slot[i]
        else:
            a = src[1]
        z = "0" if (kind == "qkv" and st == 0) else None
        k(MF16(acc, a, B0 + 4 * st, z))
        if src[0] == 'l': issue()
    def emit_stubs():
        for stub, lab, s0 in stubs:
            k.label(stub)
            k(f"s_waitcnt vmcnt(0)\ns_sub_i32 s{sBUD}, s{sBUD}, 16\ns_cmp_gt_i32 s{sBUD}, 0\ns_cselect_b32 s{sTHR}, s{sTHR}, -1")
            b_loads(k, s0, s0 + 3)
            k("s_waitcnt vmcnt(0)")
            k.umax(7, rng(B0 + 4 * s0, 12))
            k(f"v_cmp_lt_u32 vcc, s{sTHR}, v7")
            k.br("vccnz", stub)
            b_loads(k, s0 + 3)
            k.jmp(lab)
    return emit_stubs

def safe_tiles(k, QA, QBP, O, S, K, V, KB, M, T, aV, aKb, s_kt, s_end, s_img):
    k(f"""v_lshrrev_b32 v{T}, 9, v0
    v_mul_u32_u24 v{T}, 304, v{T}
    v_and_b32 v{aKb}, 0x1f0, v0
    v_add_u32 v{aV}, v{T}, v{aKb}
    v_cmp_gt_u32 vcc, {19*16}, v{aKb}
    v_mov_b32 v{T}, {OOB}
    v_cndmask_b32 v{aV}, v{T}, v{aV}, vcc
    v_lshrrev_b32 v{aKb}, 2, v{aKb}
    v_mov_b32 v{M}, {f32bits(-3e38)}
    v_mov_b32 v{KB+1}, 0""")
    for i in range(16): k(f"v_mov_b32 v{O+i}, 0")
    lp = k.uid("st")
    k.label(lp)
    k(f"""s_lshr_b32 s76, s{s_kt}, 2
    s_mul_i32 s76, s76, {QUAD}
    s_add_u32 s76, s76, s{s_img}
    s_and_b32 s77, s{s_kt}, 3
    s_lshl_b32 s78, s77, 10
    s_add_u32 s78, s78, s76
    buffer_load_dwordx4 {v(K,4)}, v0, {WS}, s78 offen sc1
    s_lshl_b32 s78, s77, 7
    s_add_u32 s78, s78, s76
    s_add_u32 s78, s78, 8960
    buffer_load_dword v{KB}, v{aKb}, {WS}, s78 offen sc1
    s_mul_i32 s78, s77, 1216
    s_add_u32 s78, s78, s76
    s_add_u32 s78, s78, 4096
    buffer_load_dwordx4 {v(V,4)}, v{aV}, {WS}, s78 offen sc1
    buffer_load_dwordx4 {v(V+4,4)}, v{aV}, {WS}, s78 offen offset:608 sc1
    s_waitcnt vmcnt(2)""")
    k(M32(S, K, QA, "0"))
    k(M8(S, KB, QBP))
    k(f"v_max3_f32 v{T}, v{S}, v{S+1}, v{M}")
    for i in range(2, 16, 2): k(f"v_max3_f32 v{T}, v{S+i}, v{S+i+1}, v{T}")
    k(f"""v_mov_b32 v{T+1}, v{T}
    v_permlane32_swap_b32 v{T}, v{T+1}
    v_max_f32 v{T}, v{T}, v{T+1}
    v_sub_f32 v{T+1}, v{M}, v{T}
    v_exp_f32 v{T+1}, v{T+1}
    v_mov_b32 v{M}, v{T}""")
    for i in range(16): k(f"v_sub_f32 v{S+i}, v{S+i}, v{M}")
    for i in range(16): k(f"v_exp_f32 v{S+i}, v{S+i}")
    for i in range(11): k(f"v_mul_f32 v{O+i}, v{O+i}, v{T+1}")
    for i in range(8): k(f"v_cvt_pk_bf16_f32 v{S+i}, v{S+2*i}, v{S+2*i+1}")
    k("s_waitcnt vmcnt(0)")
    k(M32(O, V, S))
    k(M32(O, V + 4, S + 4))
    k(f"s_add_u32 s{s_kt}, s{s_kt}, 1\ns_cmp_lt_u32 s{s_kt}, s{s_end}")
    k.br("scc1", lp)
    k("s_nop 8")

def poll_flags(k, r, soff, n=1):
    for i in range(n):
        if i and i % 4 == 0: k(f"s_add_u32 s79, s{soff}, 4096")
        k(f"buffer_load_dwordx4 {v(r+4*i,4)}, v0, {WS}, s{soff if i < 4 else 79} offen offset:{1024*(i%4)} sc1")
def check_flags(k, r, n, t):
    for i in range(2 * n):
        k(f"v_sub_u32 v{r+2*i}, v{r+2*i}, v{r+2*i+1}\nv_xor_b32 v{r+2*i}, {FLC}, v{r+2*i}")
    k.umax(t, [r + 2 * i for i in range(2 * n)])
    k(f"v_cmp_ne_u32 vcc, 0, v{t}")

def read_sel(k, vt, layer_sreg=None):
    if layer_sreg is None: k(f"v_readlane_b32 s73, v{vt}, {SEL0}")
    else: k(f"s_add_u32 s79, s{layer_sreg}, {SEL0}\nv_readlane_b32 s73, v{vt}, s79")
    k(f"s_and_b32 s{sSEL}, s73, 0x7ff\ns_xor_b32 s{sSEL}, s{sSEL}, 0x7ff")

QA, QB, KB_, KK, V0, V1, SS, OO = 8, 16, 20, 24, 28, 32, 36, 100
def attn_loop(k):
    ops = []
    def E(s, a, b): return [f"v_exp_f32 v{s+j}, v{s+j}" for j in range(a, b)]
    def CV(p, s, a, b): return [f"v_cvt_pk_bf16_f32 v{p+j}, v{s+2*j}, v{s+1+2*j}" for j in range(a, b)]
    def oK(u): return ((u >> 2) & 3) * SUPER + (u & 3) * 1024
    def oV(u, mf): return ((u >> 2) & 3) * SUPER + (u & 3) * 1216 + mf * 608
    def oKb(u): return ((u >> 2) & 3) * SUPER + (u & 3) * 128
    def RD(dst, a, off, tag): return [('ds', f"ds_read_b128 {v(dst,4)}, v{a} offset:{off}", tag)]
    def N(*tags): return [('need', t) for t in tags]
    slow = []
    for u in range(16):
        sb, sn = (SS, SS + 32) if u % 2 == 0 else (SS + 32, SS)
        a, b = sb, sb + 16
        un = u + 1
        kb = KB_ + 2 * ((un & 3) >> 1); qb = QB + 2 * (un & 1)
        o = E(a, 0, 2) + [M32(OO + 16, V1, sn + 24)] + RD(V1, 3, oV(u, 1), 'v1')
        if u % 4 == 2: o += [('ds', "ds_read_b32 v5, v1", 'full')]
        if u % 4 == 3:
            o += [('ds', f"ds_read_b32 v{KB_+2}, v4 offset:{oKb(u+3)}", 'kb2'), ('ds', f"ds_read_b32 v{KB_+3}, v4 offset:{oKb(u+4)}", 'kb3')]
        o += E(a, 2, 5) + N(f"kb{un&3}") + [M2B(sn, kb, qb)] + E(a, 5, 8) + CV(a, a, 0, 4) + E(a, 8, 11)
        o += N('v0') + [M32(OO, V0, a)] + E(a, 11, 16) + CV(a + 8, a + 8, 0, 2)
        o += N('k') + [M32(sn, KK, QA)] + CV(a + 8, a + 8, 2, 4) + E(b, 0, 4)
        o += N('v1') + [M32(OO, V1, a + 8)]
        if u % 4 == 3:
            o += [f"v_mov_b32 v5, s{sPRG}", f"s_lshl_b64 exec, 1, s{sW}", ('ds', "ds_write_b32 v1, v5", 'pw'), "s_mov_b64 exec, -1", f"s_add_u32 s{sPRG}, s{sPRG}, 1"]
        o += E(b, 4, 8) + CV(b, b, 0, 2)
        if u % 4 == 2:
            sl, bk = k.uid("slow"), k.uid("back")
            slow.append((sl, bk))
            o += N('full') + [f"v_cmp_gt_u32 vcc, s{sNEED}, v5", f"s_bitcmp1_b32 vcc_lo, {FULL}", f"s_cbranch_scc1 {k.L(sl)}", f"{k.L(bk)}:",
                              f"s_add_u32 s{sNEED}, s{sNEED}, 1", f"s_min_u32 s{sNEED}, s{sNEED}, s{sX}"]
        o += [M32(sn + 16, KK, QA + 4)] + RD(KK, 2, oK(u + 2), 'k')
        if u % 4 == 2:
            o += [('ds', f"ds_read_b32 v{KB_}, v4 offset:{oKb(u+2)}", 'kb0'), ('ds', f"ds_read_b32 v{KB_+1}, v4 offset:{oKb(u+3)}", 'kb1')]
        o += CV(b, b, 2, 4) + E(b, 8, 12)
        o += [M32(OO + 16, V0, b)] + RD(V0, 3, oV(un, 0), 'v0') + E(b, 12, 16) + CV(b + 8, b + 8, 0, 4)
        ops += o
    n = len(ops)
    out = []
    known = 99
    for pas in range(2):
        out = []
        for i, o in enumerate(ops):
            if isinstance(o, str): out.append(o)
            elif o[0] == 'ds': out.append(o[1]); known += 1
            else:
                c = 0; j = i - 1
                while True:
                    p = ops[j % n]
                    if not isinstance(p, str) and p[0] == 'ds':
                        if p[2] == o[1]: break
                        c += 1
                    j -= 1
                if c < known:
                    out.append(f"s_waitcnt lgkmcnt({c})"); known = c
    k.align(6)
    k.label("aloop")
    for o in out: k(o)
    k(f"s_bitcmp1_b32 s{sPRG}, 2")
    k.br("scc1", "aloop")
    def emit_slow():
        for sl, bk in slow:
            k.label(sl)
            k.wait([FULL], f"s{sNEED}", 5)
            k.jmp(bk)
    return emit_slow

def rowload(k, shift, ssoff, sleep=0):
    k(f"""v_bfe_u32 v2, v0, 4, 4
    v_lshrrev_b32 v3, 8, v0
    v_lshl_add_u32 v3, v2, 2, v3
    v_lshlrev_b32 v3, {shift}, v3
    v_cmp_gt_u32 vcc, 2, v2
    v_add_u32 v4, {64 << shift}, v3
    v_mov_b32 v5, {OOB}
    v_cndmask_b32 v4, v5, v4, vcc
    v_mov_b32 v6, 0x3f803f80""")
    lp = k.uid("rl")
    k.label(lp)
    k(f"""buffer_load_dwordx4 v[8:11], v3, {WS}, s{ssoff} offen sc1
    buffer_load_dwordx4 v[12:15], v4, {WS}, s{ssoff} offen sc1
    v_mov_b32 v32, 0
    v_mov_b32 v33, 0
    s_waitcnt vmcnt(0)""")
    k.umax(5, rng(8, 8))
    k("v_cmp_eq_u32 vcc, -1, v5")
    k.retry(lp, sleep)
def rowstats(k):
    for i in range(8):
        k(f"v_dot2c_f32_bf16 v32, v{8+i}, v6\nv_dot2c_f32_bf16 v33, v{8+i}, v{8+i}")
    red16(k, "v_add_f32", 32, 33)
    redx(k, "v_add_f32", [32, 33], [34, 35])
    stats_fin(k, 32, 33)
    k(f"v_add_f32 v34, {f32bits(EPS)}, v33\nv_rsq_f32 v34, v34")
HW, HD, HCS = 60, 132, 56
def rowdot(k):
    k("s_mov_b32 s76, 0x00010001\ns_mov_b32 s77, 0x00010001")
    for st in range(18):
        bt = 16 + 4 * (st & 1); x = 8 if st < 16 else 12
        if st == 16: k("s_mov_b32 s76, 0x00010001\ns_mov_b32 s77, 0x00010001")
        for i in range(4): k(f"v_cndmask_b32 v{bt+i}, 0, v{x+i}, s[76:77]")
        k("s_lshl_b64 s[76:77], s[76:77], 1\ns_nop 0")
        k(MF16(24 + 4 * (st & 1), HW + 4 * st, bt, "0" if st < 2 else None))
    rowstats(k)
    for r in range(4): k(f"v_add_f32 v{24+r}, v{24+r}, v{28+r}")
    red16(k, "v_add_f32", 24, 25, 26, 27)
    for r in range(4): k(f"v_fma_f32 v{24+r}, -v32, v{HCS+r}, v{24+r}")
    for r in range(4): k(f"v_mul_f32 v{24+r}, v{24+r}, v34")
def row_base(k, dst, region):
    k(f"""s_lshr_b32 s{dst}, s{sSEL}, 6
    s_mul_i32 s{dst}, s{dst}, {GB}
    s_bfe_u32 s79, s{sSEL}, 0x20004
    s_mul_i32 s79, s79, {TS_}
    s_add_u32 s{dst}, s{dst}, s79
    s_and_b32 s79, s{sSEL}, 15
    s_lshl_b32 s79, s79, 4
    s_add_u32 s{dst}, s{dst}, s79
    s_add_u32 s{dst}, s{dst}, {region}""")

def build_kernel(name):
    k = G(name, nvgpr=168, nsgpr=102)
    late = []
    if Kern.TS:
        k("s_memrealtime s[100:101]")
        for i in range(1, 16): k(f"s_mov_b32 s{80+i}, 0")
        k("s_waitcnt lgkmcnt(0)\ns_mov_b32 s80, s100")
    k(f"""s_cmp_ge_u32 s2, 256
    s_cbranch_scc1 {k.L('exit')}
    s_load_dwordx16 s[8:23], s[0:1], 0
    s_load_dwordx8 s[24:31], s[0:1], 64
    s_load_dwordx2 s[32:33], s[0:1], 96
    v_lshrrev_b32 v1, 6, v0
    v_and_b32 v0, 63, v0
    v_readfirstlane_b32 s{sW}, v1
    v_lshlrev_b32 v1, 2, v0
    v_add_u32 v1, {L_SYNC}, v1
    v_subrev_u32 v2, {OPD}, v0
    v_cmp_gt_u32 vcc, 4, v2
    v_lshlrev_b32 v0, 4, v0
    s_lshr_b32 s{sG}, s2, 6
    s_lshl_b32 s{sG}, s{sG}, 3
    s_and_b32 s{sJ}, s2, 7
    s_add_u32 s{sG}, s{sG}, s{sJ}
    s_bfe_u32 s{sJ}, s2, 0x30003
    s_and_b32 s{sT}, s{sW}, 3
    s_lshr_b32 s{sC}, s{sW}, 2
    s_mul_i32 s{sJ144}, s{sJ}, 144
    s_mul_i32 s{sGRP}, s{sG}, {GB}
    s_add_u32 s{sGRP}, s{sGRP}, {W_GRP}
    s_mul_i32 s{sTIL}, s{sT}, {TS_}
    s_add_u32 s{sTIL}, s{sTIL}, s{sGRP}
    s_mov_b32 s{sBUD}, {BUDGET}
    s_mov_b32 s{sL}, 0
    s_mov_b32 s{sSEL}, -1
    s_mov_b32 s{sROT}, 0
    s_mov_b32 s{sTHR}, -1
    s_cmp_lg_u32 s{sW}, 11
    s_cbranch_scc1 {k.L('noinit')}
    v_cndmask_b32 v2, 0, 1, vcc
    ds_write_b32 v1, v2""")
    k.label("noinit")
    k("s_waitcnt lgkmcnt(0)")
    k.tss(9)
    k.srd(36, P_WS, WS_SIZE); k.srd(40, P_X, XB); k.srd(44, P_WQ, D * ROWB); k.srd(48, P_WO, D * ROWB)
    k.srd(52, P_OUT, XB); k.srd(56, P_WR, ROWB); k.srd(60, P_WD, 4608 * ROWB)
    if Kern.TS:
        k.srd(96, P_DBG, 0x100000)
        k("s_mov_b32 s30, 0\ns_mov_b32 s31, 0\ns_mov_b32 s32, 0\ns_mov_b32 s33, 0")
    k(f"s_cmp_eq_u32 s{sC}, 1"); k.br("scc1", "B_start")
    k(f"s_cmp_eq_u32 s{sC}, 2"); k.br("scc1", "H_start")
    dma_col(k, 2, 4)
    k(f"""v_lshrrev_b32 v4, 7, v0
    v_mul_u32_u24 v4, {ROWB}, v4
    v_add_u32 v2, v2, v4
    v_xor_b32 v3, 64, v2
    s_mul_i32 s74, s{sT}, 6144
    s_mul_i32 s75, s{sT}, {6*9216}
    s_add_u32 s75, s75, s{sJ144}""")
    for st in range(3):
        for i in range(6):
            p = 24 * st + i
            k(f"s_add_u32 m0, s74, {1024*p}\ns_add_u32 s79, s75, {9216*p}")
            k(f"buffer_load_dwordx4 v{2 + (i & 1)}, {RWQ}, s79 offen lds")
    k.tss(10)
    k("s_barrier")
    k.tss(11)
    if "tss" in OPT: k("s_waitcnt vmcnt(17)")
    k.tss(12)
    for st in range(3):
        k(f"s_waitcnt vmcnt({12 - 6*st})")
        k.tss(13 + st)
        k.post(WF, st + 1, 4, sT)
    k.ts(1)
    k.wait([WO5], 1, 4)
    k(f"v_lshrrev_b32 v2, 1, v0\nv_add_u32 v2, {L_WO5}, v2")
    for u in range(9):
        k(TR(RES + 4 * u, 2, 1024 * u))
        if u == 4: k("s_waitcnt lgkmcnt(0)")
    k.label("A_att")
    k.ts(2)
    k.label("att")
    k(f"""s_add_u32 s74, s{sL}, 1
    s_lshl_b32 s75, {1 << QRDY}, s{sT}
    s_lshl_b32 s{sPRG}, s{sL}, 4
    s_add_u32 s{sPRG}, s{sPRG}, 1
    s_lshl_b32 s{sNEED}, s{sL}, 3
    s_add_u32 s{sX}, s{sNEED}, 8
    s_add_u32 s{sNEED}, s{sNEED}, 2
    s_mul_i32 s76, s{sT}, 2560
    s_mul_i32 s77, s{sC}, 1280
    s_add_u32 s76, s76, {L_QST}
    s_sub_u32 s78, s76, s77
    s_add_u32 s78, s78, 1280
    s_add_u32 s76, s76, s77
    v_bfe_u32 v2, v0, 6, 3
    v_mul_u32_u24 v2, 160, v2
    v_bfe_u32 v3, v0, 4, 2
    v_mul_u32_u24 v3, 36, v3
    v_add_u32 v2, v2, v3
    v_lshrrev_b32 v3, 9, v0
    v_lshl_add_u32 v4, v3, 4, v2
    v_add_u32 v6, s76, v4
    v_add_u32 v7, s78, v4
    v_cmp_eq_u32 vcc, 0, v3
    v_mov_b32 v{QB+1}, 0
    v_mov_b32 v{QB+2}, 0
    v_cndmask_b32 v4, v7, v6, vcc
    v_lshlrev_b32 v2, 4, v3
    v_sub_u32 v4, v4, v2""")
    k.wait(None, "s74", 5, smask=75, hi=False)
    k(f"""ds_read2_b32 {v(QA,2)}, v6 offset0:0 offset1:1
    ds_read2_b32 {v(QA+2,2)}, v6 offset0:2 offset1:3
    ds_read2_b32 {v(QA+4,2)}, v7 offset0:0 offset1:1
    ds_read2_b32 {v(QA+6,2)}, v7 offset0:2 offset1:3
    ds_read_b32 v{QB}, v4 offset:32
    ds_read_b32 v{QB+3}, v4 offset:32
    s_mul_i32 s76, s{sC}, {QUAD}
    s_add_u32 s76, s76, {RING}
    v_add_u32 v2, s76, v0
    v_mul_u32_u24 v3, 304, v3
    v_and_b32 v6, 0x1f0, v0
    v_add3_u32 v3, v3, v6, s76
    v_add_u32 v3, 4096, v3
    v_cmp_gt_u32 vcc, {19*16}, v6
    v_mov_b32 v7, 0x30000
    v_cndmask_b32 v3, v7, v3, vcc""")
    for i in range(32): k(f"v_mov_b32 v{OO+i}, 0")
    for i in range(4): k(f"v_mov_b32 v{V1+i}, 0\nv_mov_b32 v{SS+56+i}, 0")
    k(f"""s_waitcnt lgkmcnt(0)
    v_lshrrev_b32 v4, 2, v6
    v_add_u32 v4, s76, v4
    v_add_u32 v4, 8960, v4""")
    k.post(PROG, f"s{sPRG}", 5, sW)
    k(f"s_add_u32 s{sPRG}, s{sPRG}, 1\ns_sub_u32 s74, s{sNEED}, 1\ns_setprio 0\ns_cmp_lg_u32 s{sC}, 0")
    k.br("scc0", "att_c")
    if "noprio" not in OPT: k("s_setprio 1")
    k.label("att_c")
    k.wait([FULL], "s74", 5)
    k.ts(3)
    k(f"ds_read_b128 {v(KK,4)}, v2")
    for i in range(4): k(f"ds_read_b32 v{KB_+i}, v4 offset:{128*i}")
    k(f"ds_read_b128 {v(V0,4)}, v3\ns_waitcnt lgkmcnt(1)")
    k(M2B(SS, KB_, QB)); k(M32(SS, KK, QA)); k(M32(SS + 16, KK, QA + 4))
    k(f"ds_read_b128 {v(KK,4)}, v2 offset:1024\ns_waitcnt lgkmcnt(0)\ns_nop 8")
    late.append(attn_loop(k))
    k(M32(OO + 16, V1, SS + 56))
    k("s_setprio 2")
    k.ts(4)
    k(f"""s_sub_u32 s74, s{sPRG}, 2
    s_mul_i32 s75, s{sW}, {REDW}
    s_xor_b32 s76, s{sW}, 4
    s_lshl_b32 s77, 1, s76
    s_mul_i32 s76, s76, {REDW}
    s_add_u32 s75, s75, {L_RED}
    s_add_u32 s76, s76, {L_RED}
    v_add_u32 v2, s75, v0
    v_lshrrev_b32 v3, 1, v0
    v_lshrrev_b32 v4, 2, v0
    v_add_u32 v6, s75, v3
    v_add_u32 v7, s75, v4""")
    k.wait(rng(PROG, 8) + rng(RST1, 3), "s74", 5)
    k(f"s_cmp_eq_u32 s{sL}, 0"); k.br("scc1", "att_nosel")
    read_sel(k, 5)
    k.label("att_nosel")
    k(f"""ds_write_b128 v2, {v(OO+16,4)}
    ds_write_b128 v2, {v(OO+20,4)} offset:1024
    s_mov_b32 exec_hi, 0
    ds_write_b64 v6, {v(OO+24,2)} offset:2048
    ds_write_b32 v7, v{OO+26} offset:2304
    s_mov_b32 exec_hi, -1
    v_add_u32 v2, s76, v0
    v_add_u32 v6, s76, v3
    v_add_u32 v7, s76, v4""")
    k.post(PROG, f"s{sPRG}", 5, sW)
    k.wait(None, f"s{sPRG}", 5, smask=77, hi=False)
    k(f"""ds_read_b128 {v(SS,4)}, v2
    ds_read_b128 {v(SS+4,4)}, v2 offset:1024
    ds_read_b64 {v(SS+8,2)}, v6 offset:2048
    ds_read_b32 v{SS+10}, v7 offset:2304
    s_add_u32 s{sPRG}, s{sPRG}, 1""")
    k.post(PROG, f"s{sPRG}", 5, sW)
    k(f"""s_mul_i32 s74, s{sL}, 73728
    s_add_u32 s74, s74, s{sTIL}
    s_mul_i32 s75, s{sJ}, 2304
    s_add_u32 s75, s75, s74
    s_lshl_b32 s76, s{sC}, 7
    s_add_u32 s75, s75, s76
    v_bfe_u32 v2, v0, 6, 3
    v_bfe_u32 v3, v0, 4, 2
    v_lshrrev_b32 v4, 9, v0
    v_lshl_add_u32 v3, v3, 1, v4
    v_lshlrev_b32 v3, 8, v3
    v_lshl_add_u32 v3, v2, 4, v3
    v_lshrrev_b32 v4, 2, v0
    s_lshl_b32 s76, s{sG}, 6
    s_lshl_b32 s77, s{sT}, 4
    s_add_u32 s76, s76, s77
    s_lshl_b32 s77, s{sC}, 3
    s_add_u32 s76, s76, s77
    s_sub_u32 s76, s{sSEL}, s76
    v_cmp_ne_u32 s[8:9], s76, v2
    s_waitcnt lgkmcnt(1)""")
    for i in range(11): k(f"v_add_f32 v{OO+i}, v{OO+i}, v{SS+i}")
    k(f"""v_mov_b32 v6, v{OO+10}
    v_mov_b32 v7, 0
    v_permlane32_swap_b32 v{OO+10}, v6""")
    for i in range(8): k(f"v_fmac_f32 v7, 0, v{OO+i}")
    k(f"""s_mov_b32 exec_hi, 0
    v_fmac_f32 v7, 0, v{OO+8}
    v_fmac_f32 v7, 0, v{OO+9}
    s_mov_b32 exec_hi, -1
    v_add_f32 v7, v7, v{OO+10}
    v_mov_b32 v6, {f32bits(2.0**40)}
    v_cmp_nle_f32 s[18:19], v7, v6
    v_cmp_nle_f32 vcc, {f32bits(2.0**-40)}, v7
    s_or_b64 vcc, vcc, s[18:19]""")
    k.br("scc1", "fallback")
    k.label("att_fin")
    k(f"v_rcp_f32 v6, v{OO+10}")
    for i in range(10): k(f"v_mul_f32 v{OO+i}, v{OO+i}, v6")
    for i in range(5): k(f"v_cvt_pk_bf16_f32 v{SS+i}, v{OO+2*i}, v{OO+2*i+1}")
    k(f"""s_mov_b64 exec, s[8:9]
    buffer_store_dwordx4 {v(SS,4)}, v3, {WS}, s75 offen sc1
    s_mov_b32 exec_hi, 0
    buffer_store_dword v{SS+4}, v4, {WS}, s75 offen offset:2048 sc1
    s_mov_b64 exec, -1""")
    k.ts(5)
    def fallback():
        k.label("fallback")
        if Kern.TS:
            k(f"s_cmp_lg_u32 s32, 0\ns_cbranch_scc1 {k.L('fb2')}\ns_add_u32 s32, s{sL}, 1\ns_mov_b64 s[30:31], vcc\ns_ff1_i32_b64 s33, vcc\nv_readlane_b32 s33, v7, s33")
            k.label("fb2")
        k(f"""v_mov_b32 v{QB+2}, v{QB}
        s_mov_b32 exec_lo, 0
        v_mov_b32 v{QB+2}, 0
        s_mov_b32 exec_lo, -1
        v_mov_b32 v{QB+3}, 0
        s_mov_b32 s18, 0
        s_mov_b32 s19, 64
        s_mul_i32 s73, s{sL}, {KVS}""")
        safe_tiles(k, QA, QB + 2, OO, SS, KK, V0, KB_, SS + 16, SS + 18, SS + 20, SS + 21, 18, 19, 73)
        k(f"v_mov_b32 v6, v{OO+10}\nv_permlane32_swap_b32 v{OO+10}, v6")
        k.jmp("att_fin")
    late.append(fallback)
    k(f"s_mov_b32 s{sTHR}, -2\ns_cmp_lg_u32 s{sC}, 0")
    k.br("scc1", "B_post")
    RS = SL + 16
    k(f"""s_setprio 1
    v_bfe_u32 v2, v0, 4, 4
    v_lshrrev_b32 v3, 8, v0
    s_lshl_b32 s18, s{sG}, 6
    s_lshl_b32 s19, s{sT}, 4
    s_add_u32 s18, s18, s19
    s_lshl_b32 s19, s19, 4
    v_and_b32 v6, 0xf0, v0
    v_add_u32 v6, s19, v6
    v_add_u32 v6, {L_TOK}, v6
    ds_read_b64 {v(RS+10,2)}, v6 offset:8
    s_cmp_lg_u32 s{sL}, 0""")
    k.br("scc1", "res1")
    k(f"""v_add_u32 v4, s18, v2
    v_mul_u32_u24 v4, {ROWB}, v4
    v_lshl_add_u32 v4, v3, 3, v4""")
    for t in range(5): k(f"buffer_load_dwordx2 {v(RS+2*t,2)}, v4, {RX}, s{sJ144} offen offset:{32*t}")
    k.jmp("res2")
    k.label("res1")
    k(f"""s_mul_i32 s19, s{sJ}, 2304
    s_add_u32 s19, s19, s{sTIL}
    s_add_u32 s19, s19, {G_XX}
    s_add_u32 s8, s{sJ144}, {W_X2R}
    s_sub_u32 s18, s{sSEL}, s18
    v_lshrrev_b32 v4, 1, v3
    v_lshlrev_b32 v4, 8, v4
    v_lshl_add_u32 v4, v2, 4, v4
    v_and_b32 v5, 1, v3
    v_lshl_add_u32 v4, v5, 3, v4
    v_add_u32 v4, s19, v4
    v_lshlrev_b32 v5, 3, v3
    v_add_u32 v5, s8, v5
    v_cmp_eq_u32 vcc, s18, v2
    v_mov_b32 v7, 0x200
    v_cndmask_b32 v4, v4, v5, vcc
    v_cndmask_b32 v7, v7, 32, vcc""")
    for t in range(5):
        k(f"buffer_load_dwordx2 {v(RS+2*t,2)}, v4, {WS}, 0 offen sc1")
        if t < 4: k("v_add_u32 v4, v4, v7")
    k(f"""s_waitcnt lgkmcnt(0)
    v_cndmask_b32 v{RS+10}, v{RS+10}, 1.0, vcc
    v_cndmask_b32 v{RS+11}, v{RS+11}, 0, vcc""")
    k.label("res2")
    b_bases(k, 0)
    b_loads(k, 0)
    tr_addr(k, 2, RING, 7)
    for t in range(1, 4): k(f"v_xor_b32 v{2+t}, {32*t}, v2")
    k(f"s_add_u32 s{sNEED}, s{sL}, 1")
    k.wait([WOE], f"s{sNEED}", 7)
    def acc_init():
        k("s_waitcnt vmcnt(18)")
        for t in range(5):
            for h in range(2):
                a = ACC + 4 * t + 2 * h; r = RS + 2 * t + h
                k(f"v_lshlrev_b32 v{a}, 16, v{r}\nv_and_b32 v{a+1}, 0xffff0000, v{r}")
                k(f"v_fma_f32 v{a}, v{a}, v{RS+10}, -v{RS+11}\nv_fma_f32 v{a+1}, v{a+1}, v{RS+10}, -v{RS+11}")
        for i in range(4): k(f"v_mov_b32 v{ACC+20+i}, 0")
    late.append(gemm(k, "op", 4, acc_init))
    k(f"s_add_u32 s8, s{sL}, 2")
    k.post(OPD, "s8", 7, sT)
    k.ts(6)
    P = 8
    k(f"""v_bfe_u32 v2, v0, 8, 1
    v_lshrrev_b32 v3, 9, v0
    v_lshl_add_u32 v3, v2, 1, v3
    v_lshlrev_b32 v4, 4, v3
    v_add_u32 v4, {L_WRS}, v4
    ds_read_b128 v[20:23], v4
    ds_read_b128 v[24:27], v4 offset:64
    v_lshlrev_b32 v4, 3, v2
    v_add_u32 v5, {L_WRS}, v4
    ds_read_b64 v[28:29], v5 offset:128
    v_and_b32 v5, 0xf0, v0
    v_lshl_add_u32 v3, v3, 8, v5
    v_add_u32 v4, v4, v5
    s_mul_i32 s75, s{sJ}, 2304
    s_add_u32 s75, s75, s74
    s_add_u32 s75, s75, {G_XX}
    v_mov_b32 v30, 0
    v_mov_b32 v31, 0
    v_mov_b32 v32, 0
    v_mov_b32 v33, 0x3f803f80""")
    for t in range(4):
        for h in range(2): k(f"v_cvt_pk_bf16_f32 v{P+2*t+h}, v{ACC+4*t+2*h}, v{ACC+4*t+2*h+1}")
    for t in (0, 2):
        for h in range(2): k(f"v_permlane16_swap_b32 v{P+2*t+h}, v{P+2*t+2+h}")
    k(f"""buffer_store_dwordx4 {v(P,4)}, v3, {WS}, s75 offen sc1
    buffer_store_dwordx4 {v(P+4,4)}, v3, {WS}, s75 offen offset:1024 sc1""")
    for r in range(4): k(f"v_permlane32_swap_b32 v{ACC+20+r}, v{ACC+r}")
    k("v_mov_b32 v16, 0\nv_mov_b32 v17, 0\ns_mov_b32 exec_hi, 0")
    for r in range(4): k(f"v_add_f32 v{ACC+16+r}, v{ACC+16+r}, v{ACC+r}")
    k(f"""v_cvt_pk_bf16_f32 v16, v{ACC+16}, v{ACC+17}
    v_cvt_pk_bf16_f32 v17, v{ACC+18}, v{ACC+19}
    buffer_store_dwordx2 v[16:17], v4, {WS}, s75 offen offset:2048 sc1
    s_mov_b32 exec_hi, -1
    s_waitcnt lgkmcnt(0)""")
    for i in range(10):
        k(f"v_dot2c_f32_bf16 v30, v{P+i}, v33\nv_dot2c_f32_bf16 v31, v{P+i}, v{P+i}\nv_dot2c_f32_bf16 v32, v{P+i}, v{20+i}")
    redx(k, "v_add_f32", [30, 31, 32], [34, 35, 36])
    k(f"""s_lshl_b32 s75, s{sL}, 13
    s_add_u32 s75, s75, s{sGRP}
    s_lshl_b32 s76, s{sT}, 11
    s_add_u32 s75, s75, s76
    s_add_u32 s75, s75, {G_ST}
    s_lshl_b32 s76, s{sJ}, 8
    s_add_u32 s76, s76, s75
    s_mov_b64 exec, 0xffff
    buffer_store_dwordx3 v[30:32], v0, {WS}, s76 offen sc1
    s_mov_b64 exec, -1
    v_mov_b32 v2, {L_SW}
    ds_read_b32 v33, v2""")
    k.ts(7)
    k.label("A_st")
    k(f"""buffer_load_dwordx3 v[36:38], v0, {WS}, s75 offen sc1
    buffer_load_dwordx3 v[40:42], v0, {WS}, s75 offen offset:1024 sc1
    s_waitcnt vmcnt(0)""")
    k.umax(7, [36, 37, 38, 40, 41, 42])
    k("v_cmp_eq_u32 vcc, -1, v7")
    k.retry("A_st", 1)
    for i in range(3): k(f"v_add_f32 v{36+i}, v{36+i}, v{40+i}")
    redx(k, "v_add_f32", [36, 37, 38], [40, 41, 42])
    stats_fin(k, 36, 37)
    k(f"""v_add_f32 v40, {f32bits(EPS)}, v37
    v_rsq_f32 v40, v40
    s_waitcnt lgkmcnt(0)
    v_fma_f32 v41, -v36, v33, v38
    v_mul_f32 v41, v41, v40
    v_cvt_pk_bf16_f32 v41, v41, v41
    v_ashrrev_i32 v42, 31, v41
    v_or_b32 v42, 0x80000000, v42
    v_xor_b32 v41, v41, v42
    v_and_b32 v41, 0xffff0000, v41
    s_lshl_b32 s18, s{sG}, 6
    s_lshl_b32 s19, s{sT}, 4
    s_add_u32 s18, s18, s19
    s_sub_u32 s19, 0xffff, s18
    v_bfe_u32 v2, v0, 4, 4
    v_sub_u32 v42, s19, v2
    v_or_b32 v41, v41, v42""")
    red16(k, "v_max_u32", 41)
    k(f"s_cmp_lg_u32 s{sJ}, 7"); k.br("scc1", "nokey")
    k(f"""s_lshr_b32 s19, s18, 2
    s_lshl_b32 s76, s{sL}, 9
    s_add_u32 s19, s19, s76
    s_add_u32 s19, s19, {W_KEY}
    s_mov_b64 exec, 1
    buffer_store_dword v41, off, {WS}, s19 sc1
    s_mov_b64 exec, -1""")
    k.label("nokey")
    k(f"""v_add_f32 v38, 1.0, v40
    v_mul_f32 v39, v36, v40
    s_cmp_lg_u32 s{sL}, 0""")
    k.br("scc1", "A_tail")
    k(f"""v_mul_f32 v40, v38, v38
    v_mov_b32 v41, {f32bits(EPS)}
    v_fma_f32 v37, v40, v37, v41
    v_rsq_f32 v37, v37
    s_mov_b64 exec, 0xffff
    v_mul_f32 v37, v37, v38
    ds_write_b128 v6, v[36:39]
    s_mov_b64 exec, -1""")
    k.post(TOKF, 2, 7, sT)
    k.ts(8)
    k(f"s_mov_b32 s{sL}, 1")
    k.tscopy()
    k.jmp("A_att")
    k.label("A_tail")
    k.ts(8)
    for i in range(10):
        k(f"""v_lshlrev_b32 v20, 16, v{P+i}
        v_and_b32 v21, 0xffff0000, v{P+i}
        v_fma_f32 v20, v20, v38, -v39
        v_fma_f32 v21, v21, v38, -v39
        v_cvt_pk_bf16_f32 v{P+i}, v20, v21""")
    k(f"""v_add_u32 v5, s18, v2
    v_mul_u32_u24 v5, {ROWB}, v5
    v_lshrrev_b32 v3, 8, v3
    v_lshl_add_u32 v3, v3, 4, v5
    v_and_b32 v4, 8, v4
    v_add_u32 v4, v4, v5""")
    k.wait([SEL0 + 1], 1, 7)
    k(f"v_readlane_b32 s73, v7, {SEL0+1}\ns_and_b32 s{sSEL}, s73, 0x7ff\ns_xor_b32 s{sSEL}, s{sSEL}, 0x7ff")
    k(f"""s_sub_u32 s18, s{sSEL}, s18
    v_cmp_ne_u32 vcc, s18, v2
    s_mov_b64 exec, vcc
    buffer_store_dwordx4 {v(P,4)}, v3, {ROUT}, s{sJ144} offen sc1
    buffer_store_dwordx4 {v(P+4,4)}, v3, {ROUT}, s{sJ144} offen offset:64 sc1
    s_mov_b32 exec_hi, 0
    buffer_store_dwordx2 v[16:17], v4, {ROUT}, s{sJ144} offen offset:128 sc1""")
    k.jmp("end")
    return k, late

def role_B(k, late):
    k.label("B_start")
    k(f"""s_lshl_b32 s74, s{sG}, 6
    s_lshl_b32 s75, s{sT}, 4
    s_add_u32 s74, s74, s75
    s_mul_i32 s74, s74, {ROWB}
    v_lshrrev_b32 v2, 6, v0
    v_mul_u32_u24 v2, {ROWB}, v2
    v_and_b32 v3, 0x30, v0
    v_add_u32 v2, v2, v3""")
    for st in range(18): k(f"buffer_load_dwordx4 {v(B0+4*st,4)}, v2, {RX}, s74 offen offset:{64*st}")
    k(f"""s_lshl_b32 s74, s{sG}, 3
    s_add_u32 s74, s74, s{sJ}
    s_lshl_b32 s74, s74, 2
    s_add_u32 s74, s74, s{sT}
    s_lshl_b32 s74, s74, 3
    s_add_u32 s{sROT}, s74, {W_FL}
    s_add_u32 s74, s{sROT}, {FLS}
    v_mov_b32 v80, 0
    v_mov_b32 v81, 0
    v_mov_b32 v84, 0x3f803f80
    s_mov_b64 exec, 1
    buffer_load_dword v85, off, {WS}, s{sROT} offset:4 sc1
    buffer_store_dwordx2 v[80:81], off, {WS}, s74 sc1
    s_mov_b64 exec, -1
    s_mul_i32 s74, s{sT}, 9216
    s_add_u32 s74, s74, {RING}
    v_lshrrev_b32 v3, 4, v0
    v_and_b32 v3, 0x30, v3
    v_xor_b32 v2, v0, v3
    v_add_u32 v2, s74, v2
    v_lshrrev_b32 v4, 2, v0
    v_and_b32 v4, 0x30, v4
    v_xor_b32 v3, v3, v4
    v_and_b32 v4, 0xf0, v0
    v_lshl_add_u32 v3, v4, 2, v3
    v_add_u32 v3, s74, v3""")
    k.tss(10)
    k("s_barrier")
    k.tss(11)
    for st in range(18):
        k(f"s_waitcnt vmcnt({19 - st})")
        if st in (0, 8, 17): k.tss({0: 12, 8: 13, 17: 14}[st])
        k(f"ds_write_b128 v2, {v(B0+4*st,4)} offset:{1024*(st%9)}")
        for i in range(4):
            k(f"v_dot2c_f32_bf16 v80, v{B0+4*st+i}, v84\nv_dot2c_f32_bf16 v81, v{B0+4*st+i}, v{B0+4*st+i}")
        k(f"ds_read_b128 {v(B0+4*st,4)}, v3 offset:{1024*(st%9)}")
        if st % 6 == 5 and st < 17: k("s_waitcnt lgkmcnt(2)")
    k.ts(6)
    for ctl in ("quad_perm:[1,0,3,2]", "quad_perm:[2,3,0,1]"):
        for r in (80, 81): k(f"v_add_f32_dpp v{r}, v{r}, v{r} {ctl} {DPP_ALL}")
    stats_fin(k, 80, 81)
    k(f"""v_add_f32 v81, {f32bits(EPS)}, v81
    v_rsq_f32 v81, v81
    v_mov_b32 v82, 1.0
    v_mov_b32 v83, 0
    s_lshl_b32 s75, s{sT}, 8
    s_add_u32 s75, s75, {L_TOK}
    v_lshrrev_b32 v2, 2, v0
    v_add_u32 v2, s75, v2
    s_mov_b32 exec_lo, 0x11111111
    s_mov_b32 exec_hi, 0x11111111
    ds_write_b128 v2, v[80:83]
    s_mov_b64 exec, -1
    s_waitcnt vmcnt(1)
    v_readfirstlane_b32 s{sLIVE}, v85
    s_add_u32 s{sLIVE}, s{sLIVE}, {FLC}""")
    k.post(TOKF, 1, 7, sT)
    k.wait(rng(WF, 4) + [W5A], 1, 7)
    k(f"v_lshrrev_b32 v2, 1, v0\nv_add_u32 v2, {L_W5A}, v2")
    for u in range(9):
        k(TR(RES + 4 * u, 2, 1024 * u))
        if u == 4: k("s_waitcnt lgkmcnt(0)")
    k("s_waitcnt lgkmcnt(0)")
    k.label("B_gemm")
    tr_addr(k, 2, 0, 7)
    for t in range(1, 4): k(f"v_xor_b32 v{2+t}, {32*t}, v2")
    k(f"v_lshrrev_b32 v6, 1, v0\nv_add_u32 v6, {L_W5B}, v6")
    k.ts(7)
    late.append(gemm(k, "qkv"))
    k.ts(8)
    k(f"""s_lshl_b32 s74, {1 << (TOKF-32)}, s{sT}
    s_or_b32 s74, s74, {hex(sum(1 << (w - 32) for w in rng(CSF,5) + [RST0] + rng(OPD,4)))}
    s_add_u32 s75, s{sL}, 1
    v_lshrrev_b32 v3, 8, v0
    v_lshlrev_b32 v2, 4, v3
    v_add_u32 v2, {L_CS}, v2
    s_lshl_b32 s76, s{sT}, 8
    s_add_u32 s76, s76, {L_TOK}
    v_and_b32 v4, 0xf0, v0
    v_add_u32 v5, s76, v4
    s_mul_i32 s76, s{sT}, 2560
    s_add_u32 s76, s76, {L_QST}
    v_mul_u32_u24 v6, 10, v4
    v_lshl_add_u32 v6, v3, 3, v6
    v_add_u32 v6, s76, v6""")
    k.wait(None, "s75", 7, smask=74, hi=True)
    k("ds_read_b64 v[28:29], v5")
    for t in (4, 0, 1, 2, 3): k(f"ds_read_b128 {v(8+4*t,4)}, v2 offset:{64*t}")
    k(f"""s_lshr_b32 s77, s{sG}, 1
    s_mul_i32 s77, s77, {QUAD}
    s_mul_i32 s78, s{sL}, {KVS}
    s_add_u32 s77, s77, s78
    s_and_b32 s78, s{sG}, 1
    s_lshl_b32 s78, s78, 1
    s_lshr_b32 s18, s{sT}, 1
    s_add_u32 s78, s78, s18
    s_and_b32 s18, s{sT}, 1
    v_cmp_gt_u32 vcc, 2, v3
    s_waitcnt lgkmcnt(5)
    v_mul_f32 v30, {f32bits(QSCALE)}, v29
    v_cndmask_b32 v31, v29, v30, vcc""")
    for n, t in enumerate((4, 0, 1, 2, 3)):
        k(f"s_waitcnt lgkmcnt(4)")
        for r in range(4): k(f"v_fma_f32 v{ACC+4*t+r}, -v28, v{8+4*t+r}, v{ACC+4*t+r}")
        for r in range(4): k(f"v_mul_f32 v{ACC+4*t+r}, v{ACC+4*t+r}, v{30 if t < 4 else 31}")
        k(f"v_cvt_pk_bf16_f32 v{32+2*t}, v{ACC+4*t}, v{ACC+4*t+1}\nv_cvt_pk_bf16_f32 v{33+2*t}, v{ACC+4*t+2}, v{ACC+4*t+3}")
        k(f"ds_write_b64 v6, {v(32+2*t,2)} offset:{32*t}")
    k.post(QRDY, "s75", 7, sT)
    k(f"s_cmp_ge_u32 s{sJ}, 6"); k.br("scc1", "kv_done")
    k(f"s_cmp_eq_u32 s{sJ}, 4"); k.br("scc1", "kv_kb")
    k(f"s_cmp_ge_u32 s{sJ}, 2"); k.br("scc1", "kv_v")
    k(f"""s_lshl_b32 s78, s78, 10
    s_add_u32 s77, s77, s78
    s_lshl_b32 s78, s{sJ}, 9
    s_add_u32 s77, s77, s78
    s_lshl_b32 s78, s18, 8
    s_add_u32 s77, s77, s78
    v_and_b32 v3, 1, v3
    v_lshl_add_u32 v4, v3, 3, v4
    s_mov_b32 exec_lo, 0
    buffer_store_dwordx2 v[40:41], v4, {WS}, s77 offen sc1""")
    k.jmp("kv_done")
    k.label("kv_kb")
    k(f"""s_lshl_b32 s78, s78, 7
    s_add_u32 s77, s77, s78
    s_lshl_b32 s78, s18, 6
    s_add_u32 s77, s77, s78
    s_add_u32 s77, s77, 8960
    v_lshrrev_b32 v4, 2, v4
    s_mov_b32 exec_lo, 0
    s_mov_b32 exec_hi, 0xffff0000
    buffer_store_dword v41, v4, {WS}, s77 offen sc1""")
    k.jmp("kv_done")
    k.label("kv_v")
    k(f"""v_bfe_u32 v2, v0, 6, 3
    v_mul_u32_u24 v2, 160, v2
    v_bfe_u32 v5, v0, 4, 2
    v_lshl_add_u32 v2, v5, 3, v2
    v_add_u32 v2, s76, v2
    ds_read_b64_tr_b16 v[8:9], v2 offset:128
    ds_read_b64_tr_b16 v[10:11], v2 offset:{128+1280}
    s_mul_i32 s78, s78, 1216
    s_add_u32 s77, s77, s78
    s_mul_i32 s78, s18, 608
    s_add_u32 s77, s77, s78
    s_add_u32 s77, s77, 4096
    v_and_b32 v3, 1, v3
    v_mul_u32_u24 v3, 304, v3
    s_cmp_eq_u32 s{sJ}, 5""")
    k.br("scc1", "kv_v5")
    k(f"""v_lshl_add_u32 v3, v5, 4, v3
    v_bfe_u32 v5, v0, 6, 1
    v_lshl_add_u32 v3, v5, 7, v3
    s_and_b32 s78, s{sJ}, 1
    s_lshl_b32 s78, s78, 6
    s_add_u32 s77, s77, s78
    s_mov_b64 exec, 0xff00ff00
    s_waitcnt lgkmcnt(0)
    buffer_store_dwordx4 v[8:11], v3, {WS}, s77 offen sc1""")
    k.jmp("kv_done")
    k.label("kv_v5")
    k(f"""v_add3_u32 v3, v3, v4, 32
    s_waitcnt lgkmcnt(0)
    s_mov_b64 exec, 0x20002000
    v_add_u32 v3, 48, v3
    v_mov_b32 v8, 0x3f803f80
    v_mov_b32 v9, 0x3f803f80
    v_mov_b32 v10, 0x3f803f80
    v_mov_b32 v11, 0x3f803f80
    s_mov_b64 exec, 0xe000e000
    buffer_store_dwordx4 v[8:11], v3, {WS}, s77 offen sc1""")
    k.label("kv_done")
    k(f"""s_mov_b64 exec, 1
    v_mov_b32 v2, s{sLIVE}
    s_waitcnt vmcnt(0)
    buffer_store_dword v2, off, {WS}, s{sROT} sc1
    s_mov_b64 exec, -1""")
    k.ts(2)
    k.jmp("att")
    k.label("B_post")
    wo_setup(k, 2, 3, 4, 5)
    k(f"""s_and_b32 s75, s{sT}, 1
    s_lshl_b32 s75, s75, 6
    v_xor_b32 v2, s75, v2
    v_xor_b32 v3, s75, v3
    v_xor_b32 v4, s75, v4
    s_mul_i32 s75, s{sT}, {72*ROWB}
    s_add_u32 s75, s75, s{sJ144}
    s_add_u32 s75, s75, {4*72*ROWB}
    s_mul_i32 s76, s{sT}, 9216
    s_add_u32 s76, s76, {RING + 4*9216}""")
    k.wait(rng(PROG, 8), f"s{sPRG}", 5)
    wo_dma(k, 2, 3, 4, 75, 76)
    k(f"s_add_u32 s77, s{sL}, 1\ns_waitcnt vmcnt(0)\ns_setprio 0")
    k.post(WOL, "s77", 5, sT)
    k(f"s_cmp_lg_u32 s{sL}, 0"); k.br("scc1", "end")
    k.tscopy()
    k.ts(6)
    k(f"""s_mov_b32 s{sL}, 1
    s_mov_b32 s{sLIVE}, {FLC}
    s_add_u32 s{sROT}, s{sROT}, {FLS}
    s_add_u32 s74, s{sTIL}, {G_XX}
    s_lshl_b32 s18, {1 << (OPD-32)}, s{sT}""")
    b_bases(k, 0)
    k.wait(None, 2, 5, smask=18, hi=True)
    b_loads(k, 0)
    k.jmp("B_gemm")

def blk_row(k, dst, t):
    k(f"""v_bfe_u32 v{dst}, v0, 7, 2
    v_lshlrev_b32 v{dst}, 3, v{dst}
    v_lshrrev_b32 v{t}, 9, v0
    v_lshl_add_u32 v{dst}, v{t}, 2, v{dst}
    v_bfe_u32 v{t}, v0, 5, 2
    v_add_u32 v{dst}, v{dst}, v{t}""")

def colsum_out(k, acc, tile_sreg):
    k(f"""v_lshrrev_b32 v4, 4, v0
    s_lshl_b32 s74, s{tile_sreg}, 6
    s_add_u32 s74, s74, {L_CS}
    v_add_u32 v4, s74, v4
    s_mov_b32 exec_lo, 0x00010001
    s_mov_b32 exec_hi, 0x00010001
    ds_write_b128 v4, {v(acc,4)}
    s_mov_b64 exec, -1""")
    k.post(CSF, BIG, 5, tile_sreg)

def slot_dma(k, sso, sm0):
    for q in range(5):
        k(f"s_add_u32 m0, s{sm0}, {4096*q}\ns_add_u32 s79, s{sso}, {4096*q}")
        for i in range(4 if q < 4 else 3):
            if q == 4 and i == 2: k("s_mov_b32 exec_hi, 0")
            k(f"buffer_load_dwordx4 v0, {WS}, s79 offen offset:{1024*i} sc1 lds")
    k("s_mov_b32 exec_hi, -1")

def role_H(k, late):
    k.label("H_start")
    k("s_setprio 2")
    k(f"s_cmp_eq_u32 s{sT}, 2"); k.br("scc1", "H2s")
    k(f"s_cmp_eq_u32 s{sT}, 3"); k.br("scc1", "H3s")
    k(f"""s_add_u32 s74, s{P_WQ}, s{sJ144}
    s_addc_u32 s75, s{P_WQ+1}, 0
    s_lshr_b32 s78, 0x2c, s{sJ}
    s_bitcmp1_b32 s78, 0
    s_cselect_b32 s76, s{P_WV}, s{P_WK}
    s_cselect_b32 s77, s{P_WV+1}, s{P_WK+1}
    s_and_b32 s78, s{sJ}, 1
    s_lshl_b32 s78, s78, 4
    s_cmp_ge_u32 s{sJ}, 4
    s_cselect_b32 s78, 20, s78
    s_add_u32 s76, s76, s78
    s_addc_u32 s77, s77, 0
    s_mul_i32 s78, s{sT}, 288""")
    blk_row(k, 2, 3)
    k(f"""v_add_u32 v2, s78, v2
    v_and_b32 v3, 16, v0
    v_cmp_eq_u32 vcc, 0, v3
    v_mov_b32 v4, s74
    v_mov_b32 v5, s75
    v_mov_b32 v6, s76
    v_mov_b32 v7, s77
    v_cndmask_b32 v4, v6, v4, vcc
    v_cndmask_b32 v5, v7, v5, vcc
    v_mov_b32 v6, {ROWB}
    v_cndmask_b32 v6, 36, v6, vcc
    v_mul_u32_u24 v2, v2, v6
    v_mov_b32 v7, 0x80
    v_cndmask_b32 v7, 0, v7, vcc
    v_add_u32 v2, v2, v7
    v_lshlrev_b32 v6, 5, v6
    v_add_co_u32 v4, vcc, v4, v2
    v_addc_co_u32 v5, vcc, 0, v5, vcc
    s_cmp_eq_u32 s{sT}, 0
    s_cselect_b32 s74, {L_W5A}, {L_W5B}""".replace(f"s_cselect_b32 s74, {L_W5A}, {L_W5B}", f"s_mov_b32 s74, {L_W5B}\ns_cselect_b32 s74, {L_W5A}, s74"))
    for u in range(9):
        k(f"s_add_u32 m0, s74, {1024*u}\nglobal_load_lds_dwordx4 v[4:5], off")
        if u < 8: k("v_add_co_u32 v4, vcc, v4, v6\nv_addc_co_u32 v5, vcc, 0, v5, vcc")
    k.tss(10)
    k("s_barrier")
    k.tss(11)
    k("s_waitcnt vmcnt(0)")
    k.tss(12)
    k.post(W5A, 3, 5, sT)
    k(f"s_cmp_eq_u32 s{sT}, 0"); k.br("scc1", "H_cs")
    k.wait([W5A], 3, 5)
    k(f"v_lshrrev_b32 v2, 1, v0\nv_add_u32 v3, {L_W5B}, v2\nv_add_u32 v2, {L_W5A}, v2")
    for i in range(4): k(f"v_mov_b32 v{8+i}, 0x3f803f80")
    for u in range(18):
        k(TR(HW + 4 * u, 2 if u < 9 else 3, 1024 * (u % 9)))
        if u % 6 == 5:
            k("s_waitcnt lgkmcnt(0)")
            for w in range(u - 5, u + 1): k(MF16(HCS, HW + 4 * w, 8, "0" if w == 0 else None))
    k("s_mov_b32 s75, 4")
    colsum_out(k, HCS, 75)
    k.jmp("H_cs")
    k.label("H2s")
    k(f"""s_lshr_b32 s74, s2, 3
    s_mul_i32 s74, s74, {162*128}
    v_lshlrev_b32 v2, 3, v0
    s_mov_b32 exec_hi, 0x3fffff""")
    for i in range(3): k(f"buffer_load_dword v{4+i}, v2, {RWQ}, s74 offen\ns_add_u32 s74, s74, {54*128}")
    k("s_mov_b32 exec_hi, -1\ns_barrier\ns_waitcnt vmcnt(0)")
    k.jmp("H_cs")
    k.label("H2w")
    k(f"""v_bfe_u32 v2, v0, 7, 2
    v_bfe_u32 v3, v0, 4, 1
    v_lshl_add_u32 v2, v3, 2, v2
    v_lshrrev_b32 v3, 9, v0
    v_bfe_u32 v4, v0, 5, 2
    v_lshl_add_u32 v3, v3, 2, v4
    v_lshrrev_b32 v4, 1, v3
    v_mul_u32_u24 v4, 18, v4
    v_and_b32 v5, 1, v3
    v_add3_u32 v4, v4, v5, 16
    s_add_u32 s74, s{sJ144}, 128""")
    for u in range(9):
        k(f"""v_add_u32 v5, {8*u}, v2
        v_mul_u32_u24 v6, 57, v5
        v_lshrrev_b32 v6, 9, v6
        v_mul_u32_u24 v7, 9, v6
        v_sub_u32 v5, v5, v7
        v_lshrrev_b32 v7, 1, v5
        v_mul_u32_u24 v7, 18, v7
        v_cmp_eq_u32 vcc, 8, v5
        v_and_b32 v5, 1, v5
        v_lshl_add_u32 v5, v5, 3, v3
        v_add_u32 v5, v5, v7
        v_cndmask_b32 v5, v5, v4, vcc
        v_mul_u32_u24 v6, 72, v6
        v_add_u32 v5, v5, v6
        v_mul_u32_u24 v{8+u}, {ROWB}, v5
        s_mov_b32 m0, {L_WO5 + 1024*u}
        buffer_load_dwordx4 v{8+u}, {RWO}, s74 offen lds""")
    k("s_waitcnt vmcnt(0)")
    k.post(WO5, 3, 5)
    k.jmp("H_work")
    k.label("H3s")
    k(f"""buffer_load_dwordx4 v[12:15], v0, {RWR}, 0 offen
    buffer_load_dwordx4 v[16:19], v0, {RWR}, 0 offen offset:1024
    buffer_load_dwordx4 v[20:23], v0, {RWR}, s{sJ144} offen
    s_mul_i32 s74, s{sJ}, 9216
    s_add_u32 s74, s74, s{sGRP}""")
    for i in range(4): k(f"v_mov_b32 v{8+i}, -1\nv_mov_b32 v{24+i}, 0")
    for i in range(9):
        if i and i % 4 == 0: k("s_add_u32 s74, s74, 4096")
        k(f"buffer_store_dwordx4 v[8:11], v0, {WS}, s74 offen offset:{1024*(i%4)} sc1")
    k(f"""s_lshl_b32 s74, s{sG}, 4
    s_add_u32 s74, s74, {W_KEY}
    s_cmp_lg_u32 s{sJ}, 7""")
    k.br("scc1", "H3k")
    k(f"""s_mov_b64 exec, 1
    buffer_store_dwordx4 v[24:27], off, {WS}, s74 sc1
    buffer_store_dwordx4 v[24:27], off, {WS}, s74 offset:{KEYS} sc1
    s_mov_b64 exec, -1""")
    k.label("H3k")
    k(f"""s_barrier
    v_mov_b32 v6, 0x3f803f80
    v_mov_b32 v7, 0
    s_waitcnt vmcnt(0)""")
    for i in range(8): k(f"v_dot2c_f32_bf16 v7, v{12+i}, v6")
    red16(k, "v_add_f32", 7)
    redx(k, "v_add_f32", [7], [5])
    k(f"""v_add_u32 v2, {L_WRS}, v0
    v_mov_b32 v3, {L_SW}
    s_mov_b64 exec, 0x1ff
    ds_write_b128 v2, v[20:23]
    ds_write_b32 v3, v7
    s_mov_b64 exec, -1""")
    k.post(RST0, BIG, 5)
    k.label("H_cs")
    tr_addr(k, 2, 0, 5)
    k(f"s_lshl_b32 s74, s{sT}, 5\nv_xor_b32 v2, s74, v2")
    for i in range(4): k(f"v_mov_b32 v{8+i}, 0x3f803f80")
    for st in range(3):
        k.wait(rng(WF, 4), st + 1, 5)
        for i in range(6): k(TR(16 + 4 * i, 2, 4096 * i))
        k(f"v_add_u32 v2, {6*4096}, v2")
        for i in range(6):
            k(f"s_waitcnt lgkmcnt({10 - 2*i})")
            k(MF16(12, 16 + 4 * i, 8, "0" if st + i == 0 else None))
    colsum_out(k, 12, sT)
    k.ts(1)
    k(f"s_cmp_eq_u32 s{sT}, 2"); k.br("scc1", "H2w")
    k(f"s_cmp_lg_u32 s{sT}, 0"); k.br("scc1", "H_work")
    wo_setup(k, 2, 3, 4, 5)
    k("v_xor_b32 v6, 64, v4")
    k(f"s_lshr_b32 s{sROT}, s{sG}, 2")
    k.label("H0_layer")
    k(f"""s_lshl_b32 s{sPRG}, s{sL}, 4
    s_lshl_b32 s{sNEED}, s{sL}, 3
    s_mul_i32 s73, s{sL}, {FLS}
    s_add_u32 s73, s73, {W_FL}
    s_add_u32 s74, s{sROT}, 1
    s_and_b32 s74, s74, 7
    s_lshl_b32 s75, s74, 10
    s_add_u32 s75, s75, s73
    s_lshl_b32 s74, s{sROT}, 10
    s_add_u32 s74, s74, s73
    s_add_u32 s18, s{sL}, 1""")
    def src(i):
        k(f"""s_add_u32 s76, s{sROT}, {i}
        s_and_b32 s76, s76, 7
        s_mul_i32 s76, s76, {SUPER}
        s_mul_i32 s77, s{sL}, {KVS}
        s_add_u32 s76, s76, s77""")
    src(0)
    k(f"s_mov_b32 s77, {RING}")
    k.wait(rng(QRDY, 4), "s18", 7)
    k.label("H0_f0")
    poll_flags(k, 8, 74)
    k("s_waitcnt vmcnt(0)")
    check_flags(k, 8, 1, 7)
    k.retry("H0_f0", 1)
    k.ts(5)
    slot_dma(k, 76, 77)
    src(1)
    k(f"s_mov_b32 s77, {RING + SUPER}\ns_add_u32 s{sNEED}, s{sNEED}, 1")
    k.label("H0_f1")
    poll_flags(k, 8, 75)
    k("s_waitcnt vmcnt(1)")
    k.post(FULL, f"s{sNEED}", 7)
    k("s_waitcnt vmcnt(0)")
    check_flags(k, 8, 1, 7)
    k.retry("H0_f1", 1)
    slot_dma(k, 76, 77)
    k(f"s_add_u32 s{sNEED}, s{sNEED}, 1")
    k.label("H0_fa")
    poll_flags(k, 8, 73, 8)
    k("s_waitcnt vmcnt(8)")
    k.post(FULL, f"s{sNEED}", 7)
    k("s_waitcnt vmcnt(0)")
    check_flags(k, 8, 8, 7)
    k.retry("H0_fa", 2)
    k.ts(2)
    k(f"s_add_u32 s{sPRG}, s{sPRG}, 1")
    k.wait(rng(PROG, 8), f"s{sPRG}", 7, sleep=1)
    for i in (2, 3):
        src(i)
        k(f"s_mov_b32 s77, {RING + i*SUPER}")
        slot_dma(k, 76, 77)
    for i in (2, 3):
        k(f"s_add_u32 s{sNEED}, s{sNEED}, 1\ns_waitcnt vmcnt({19 if i == 2 else 0})")
        k.post(FULL, f"s{sNEED}", 7)
    k(f"s_cmp_eq_u32 s{sL}, 0"); k.br("scc1", "H0_ns")
    k(f"""s_lshl_b32 s74, s{sG}, 3
    s_add_u32 s74, s74, s{sJ}
    s_lshl_b32 s74, s74, 5
    s_add_u32 s74, s74, {W_FL}
    v_lshrrev_b32 v7, 1, v0
    s_mov_b64 exec, 15
    buffer_load_dword v8, v7, {WS}, s74 offen sc1
    s_waitcnt vmcnt(0)
    buffer_store_dword v8, v7, {WS}, s74 offen offset:4 sc1
    s_mov_b64 exec, -1""")
    k.label("H0_ns")
    k("s_mov_b32 s18, 4")
    k.label("H0_ring")
    k(f"s_add_u32 s{sPRG}, s{sPRG}, 1")
    k.wait(rng(PROG, 8), f"s{sPRG}", 7, sleep=2)
    k(f"s_cmp_lg_u32 s{sNEED}, 15"); k.br("scc1", "H0_nopf")
    k(f"s_mov_b32 s74, {W_PF}\nv_lshrrev_b32 v9, 2, v0\nv_min_u32 v9, 20, v9")
    k.label("H0_pf")
    k(f"buffer_load_dword v8, v9, {WS}, s74 offen sc1\ns_waitcnt vmcnt(0)\nv_cmp_eq_u32 vcc, -1, v8")
    k.retry("H0_pf", 2)
    k.ts(3)
    k.label("H0_nopf")
    src("s18")
    k(f"s_and_b32 s77, s18, 3\ns_mul_i32 s77, s77, {SUPER}\ns_add_u32 s77, s77, {RING}")
    slot_dma(k, 76, 77)
    k(f"s_add_u32 s{sNEED}, s{sNEED}, 1\ns_waitcnt vmcnt(0)")
    k.post(FULL, f"s{sNEED}", 7)
    k("s_add_u32 s18, s18, 1\ns_cmp_lt_u32 s18, 8"); k.br("scc1", "H0_ring")
    for h in range(2):
        k(f"s_add_u32 s{sPRG}, s{sPRG}, 1")
        k.wait(rng(PROG, 8), f"s{sPRG}", 7, sleep=2)
        for jj in (2 * h, 2 * h + 1):
            k(f"s_add_u32 s75, s{sJ144}, {jj*72*ROWB}\ns_mov_b32 s76, {RING + jj*9216}")
            if jj & 1: wo_dma(k, 3, 2, 6, 75, 76)
            else: wo_dma(k, 2, 3, 4, 75, 76)
    k(f"s_add_u32 s74, s{sL}, 1\ns_waitcnt vmcnt(0)")
    k.post(WOE, "s74", 7)
    k(f"s_add_u32 s74, s{sL}, 2")
    k.wait(rng(OPD, 4), "s74", 7, sleep=1)
    k(f"s_lshl_b32 s74, s{sL}, 9\ns_add_u32 s74, s74, {W_KEY}\nv_lshrrev_b32 v7, 1, v0")
    k.label("H0_key")
    k(f"buffer_load_dwordx2 v[8:9], v7, {WS}, s74 offen sc1\ns_waitcnt vmcnt(0)\nv_min_u32 v10, v8, v9\nv_cmp_eq_u32 vcc, 0, v10")
    k.retry("H0_key", 1)
    k("v_max_u32 v8, v8, v9")
    red16(k, "v_max_u32", 8)
    redx(k, "v_max_u32", [8], [9])
    k(f"v_max_u32 v8, 2, v8\ns_add_u32 s79, s{sL}, {SEL0}\ns_lshl_b64 exec, 1, s79\nds_write_b32 v1, v8\ns_mov_b64 exec, -1")
    k.ts(4)
    k(f"s_cmp_lg_u32 s{sL}, 0"); k.br("scc1", "end")
    k.tscopy()
    k(f"""v_readfirstlane_b32 s74, v8
    s_mov_b32 s{sL}, 1
    s_not_b32 s74, s74
    s_bfe_u32 s{sROT}, s74, 0x30008
    s_add_u32 s{sROT}, s{sROT}, 1
    s_and_b32 s{sROT}, s{sROT}, 7""")
    k.jmp("H0_layer")

def role_Hw(k, late):
    sHW, sU = 70, 71
    k.label("H_work")
    k(f"s_sub_u32 s{sHW}, s{sT}, 1")
    k.wait(rng(PROG, 8), 2, 5, sleep=8)
    for i in range(4): k(f"v_mov_b32 v{8+i}, -1")
    k(f"""s_mul_i32 s74, s{sJ}, 29696
    s_add_u32 s74, s74, s{sGRP}
    s_add_u32 s74, s74, 73728
    s_lshl_b32 s75, s{sG}, 3
    s_add_u32 s75, s75, s{sJ}
    s_mul_i32 s75, s75, 11264
    s_add_u32 s75, s75, {W_GLB - 29*1024}
    s_mul_i32 s76, s{sHW}, 13
    s_add_u32 s77, s76, 14""")
    k.label("H_rst")
    k(f"""s_cmp_lt_u32 s76, 29
    s_cselect_b32 s78, s74, s75
    s_lshl_b32 s79, s76, 10
    s_add_u32 s78, s78, s79
    buffer_store_dwordx4 v[8:11], v0, {WS}, s78 offen sc1
    s_add_u32 s76, s76, 1
    s_cmp_lt_u32 s76, s77""")
    k.br("scc1", "H_rst")
    k("s_waitcnt vmcnt(0)")
    k.post(RST1, BIG, 5, sHW)
    k(f"s_cmp_ge_u32 s{sG}, 24"); k.br("scc1", "H_free")
    k(f"""s_and_b32 s{sU}, s2, 7
    s_mul_i32 s{sU}, s{sU}, 24
    s_lshr_b32 s74, s2, 3
    s_add_u32 s{sU}, s{sU}, s74
    s_mul_i32 s{sU}, s{sU}, 3
    s_add_u32 s{sU}, s{sU}, s{sHW}
    s_lshl_b32 s74, s{sU}, 4""")
    blk_row(k, 2, 3)
    k(f"""v_and_b32 v3, 16, v0
    v_cmp_eq_u32 vcc, 0, v3
    v_mov_b32 v4, s{P_WG}
    v_mov_b32 v5, s{P_WG+1}
    v_mov_b32 v6, s{P_WU}
    v_mov_b32 v7, s{P_WU+1}
    v_cndmask_b32 v4, v6, v4, vcc
    v_cndmask_b32 v5, v7, v5, vcc
    v_mul_u32_u24 v6, 9216, v2
    v_add_u32 v6, s74, v6
    v_add_co_u32 v4, vcc, v4, v6
    v_addc_co_u32 v5, vcc, 0, v5, vcc
    v_and_b32 v6, 7, v2
    v_mul_u32_u24 v6, {ROWB}, v6
    v_lshrrev_b32 v2, 3, v2
    v_lshl_add_u32 v6, v2, 5, v6
    v_add_u32 v6, v6, v3
    s_mul_i32 s74, s{sU}, {8*ROWB}
    s_lshl_b32 s75, s{sHW}, 10
    s_add_u32 s75, s75, {L_FT}
    v_add_u32 v2, s75, v0
    v_lshrrev_b32 v3, 1, v0
    v_add_u32 v3, s75, v3""")
    def xpose(r0, n):
        for u in range(n):
            k(f"s_waitcnt vmcnt({n-1-u})\nds_write_b128 v2, {v(r0+4*u,4)}")
            k(TR(r0 + 4 * u, 3, 0))
            k("s_waitcnt lgkmcnt(0)")
    for half in range(2):
        for u in range(9):
            k(f"global_load_dwordx4 {v(HW+36*half+4*u,4)}, v[4:5], off")
            if half * 9 + u < 17: k(f"v_add_co_u32 v4, vcc, {32*9216}, v4\nv_addc_co_u32 v5, vcc, 0, v5, vcc")
        xpose(HW + 36 * half, 9)
    for u in range(9): k(f"buffer_load_dwordx4 {v(HD+4*u,4)}, v6, {RWD}, s74 offen offset:{128*u}")
    xpose(HD, 9)
    for i in range(4): k(f"v_mov_b32 v{8+i}, 0x3f803f80")
    for u in range(18): k(MF16(HCS, HW + 4 * u, 8, "0" if u == 0 else None))
    k.ts(2)
    k.label("F_layer")
    k(f"s_lshl_b32 s74, s{sL}, 4\ns_add_u32 s74, s74, 11\ns_lshl_b32 s75, {1 << (SEL0-32)}, s{sL}")
    k.wait(rng(PROG, 8), "s74", 5, sleep=8)
    k.wait(None, 1, 5, smask=75, hi=True)
    read_sel(k, 5, sL)
    k(f"s_mul_i32 s75, s{sL}, 73728\ns_add_u32 s75, s75, {W_GRP + G_XX}")
    row_base(k, 74, "s75")
    k.ts(3)
    rowload(k, 8, 74)
    k.ts(4)
    rowdot(k)
    k(f"""s_and_b32 s75, s73, 0xffff0000
    s_ashr_i32 s76, s75, 31
    s_not_b32 s76, s76
    s_or_b32 s76, s76, 0x80000000
    s_xor_b32 s75, s75, s76
    s_and_b32 s75, s75, 0xffff0000
    v_mov_b32 v7, {f32bits(-math.log2(math.e))}
    v_mul_f32 v6, s75, v7
    v_exp_f32 v6, v6""")
    for r in range(4): k(f"v_mov_b32 v{28+r}, v{24+r}")
    k("v_add_f32 v6, 1.0, v6")
    for r in range(4): k(f"v_permlane32_swap_b32 v{24+r}, v{28+r}")
    for r in range(4): k(f"v_mul_f32 v{8+r}, v{24+r}, v7")
    for r in range(4): k(f"v_exp_f32 v{8+r}, v{8+r}")
    for r in range(4): k(f"v_mul_f32 v{24+r}, v{24+r}, v{28+r}")
    for r in range(4): k(f"v_fma_f32 v{8+r}, v{8+r}, v6, v6")
    for r in range(4): k(f"v_rcp_f32 v{8+r}, v{8+r}")
    for r in range(4): k(f"v_mul_f32 v{24+r}, v{24+r}, v{8+r}")
    k(f"""v_cvt_pk_bf16_f32 v8, v24, v25
    v_cvt_pk_bf16_f32 v9, v26, v27
    v_mov_b32 v10, v8
    v_mov_b32 v11, v9
    v_permlane16_swap_b32 v8, v10
    v_permlane16_swap_b32 v9, v11
    s_mov_b32 s76, 0x00020001
    s_mov_b32 s77, 0x00080004""")
    for i in range(4): k(f"v_cndmask_b32 v{8+i}, 0, v{8+i}, s[76:77]")
    k(f"""v_bfe_u32 v2, v0, 4, 2
    v_mul_u32_u24 v2, {576*64}, v2
    v_lshrrev_b32 v3, 8, v0
    v_lshl_add_u32 v2, v3, 4, v2
    s_mul_i32 s74, s{sL}, {YPS}
    s_lshl_b32 s75, s{sU}, 6
    s_add_u32 s74, s74, s75
    s_add_u32 s74, s74, {W_YP}""")
    for f in range(9): k(MF16(16 + 4 * f, HD + 4 * f, 8, "0"))
    k("s_mov_b32 exec_lo, 0x000f000f\ns_mov_b32 exec_hi, 0x000f000f")
    for f in range(9):
        k(f"buffer_store_dwordx4 {v(16+4*f,4)}, v2, {WS}, s74 offen sc1")
        if f < 8: k(f"s_add_u32 s74, s74, {4*576*64}")
    k("s_mov_b64 exec, -1")
    k.ts(5)
    k(f"s_cmp_lg_u32 s{sL}, 0"); k.br("scc1", "end")
    k.tscopy()
    k(f"s_mov_b32 s{sL}, 1")
    k.jmp("F_layer")
    k.label("H_free")
    k(f"s_cmp_ge_u32 s{sG}, 30"); k.br("scc1", "R_start")
    k(f"""s_sub_u32 s72, s{sG}, 24
    s_lshl_b32 s72, s72, 3
    s_add_u32 s72, s72, s{sJ}
    s_mul_i32 s{sU}, s72, 3
    s_add_u32 s{sU}, s{sU}, s{sHW}""")
    k.label("Z_layer")
    k(f"s_lshl_b32 s74, s{sL}, 4\ns_add_u32 s74, s74, 11\ns_lshl_b32 s75, {1 << (SEL0-32)}, s{sL}")
    k.wait(rng(PROG, 8), "s74", 5, sleep=8)
    k.wait(None, 1, 5, smask=75, hi=True)
    read_sel(k, 5, sL)
    k(f"s_mul_i32 s75, s{sL}, 73728\ns_add_u32 s75, s75, {W_GRP + G_XX}")
    row_base(k, 74, "s75")
    rowload(k, 8, 74)
    k(f"""s_lshr_b32 s75, s{sU}, 1
    s_lshl_b32 s75, s75, 8
    s_add_u32 s74, s74, s75
    s_and_b32 s75, s{sU}, 1
    s_lshl_b32 s75, s75, 3
    s_add_u32 s74, s74, s75
    buffer_load_dwordx2 v[36:37], off, {WS}, s74 sc1""")
    rowstats(k)
    k(f"""s_lshr_b32 s74, s{sU}, 2
    s_mul_i32 s74, s74, {576*64}
    s_and_b32 s75, s{sU}, 3
    s_lshl_b32 s75, s75, 4
    s_add_u32 s74, s74, s75
    s_mul_i32 s75, s{sL}, {YPS}
    s_add_u32 s74, s74, s75
    s_add_u32 s74, s74, {W_YP}
    v_lshlrev_b32 v2, 2, v0
    v_mul_f32 v33, v32, v34
    v_add_f32 v34, 1.0, v34
    s_waitcnt vmcnt(0)
    v_lshlrev_b32 v38, 16, v36
    v_and_b32 v39, 0xffff0000, v36
    v_lshlrev_b32 v40, 16, v37
    v_and_b32 v41, 0xffff0000, v37""")
    for r in range(4): k(f"v_fma_f32 v{38+r}, v{38+r}, v34, -v33")
    k.ts(3)
    k.label("Z_y")
    k("s_mov_b32 s75, s74")
    for i in range(9):
        k(f"buffer_load_dwordx4 {v(60+4*i,4)}, v2, {WS}, s75 offen sc1")
        if i < 8: k("s_add_u32 s75, s75, 4096")
    k("s_waitcnt vmcnt(0)")
    k.umax(5, rng(60, 36))
    k("v_cmp_eq_u32 vcc, -1, v5")
    k.retry("Z_y", 4)
    k.ts(4)
    for i in range(1, 9):
        for r in range(4): k(f"v_add_f32 v{60+r}, v{60+r}, v{60+4*i+r}")
    red16(k, "v_add_f32", 60, 61, 62, 63)
    redx(k, "v_add_f32", rng(60, 4), rng(64, 4))
    for r in range(4): k(f"v_add_f32 v{38+r}, v{38+r}, v{60+r}")
    k(f"""v_cvt_pk_bf16_f32 v36, v38, v39
    v_cvt_pk_bf16_f32 v37, v40, v41
    s_lshl_b32 s74, s{sU}, 3
    s_mov_b64 exec, 1
    s_cmp_eq_u32 s{sL}, 0""")
    k.br("scc1", "Z_l0")
    k(f"""s_mul_i32 s75, s{sSEL}, {ROWB}
    s_add_u32 s74, s74, s75
    buffer_store_dwordx2 v[36:37], off, {ROUT}, s74 sc1""")
    k.jmp("end")
    k.label("Z_l0")
    k(f"""s_add_u32 s74, s74, {W_X2R}
    buffer_store_dwordx2 v[36:37], off, {WS}, s74 sc1
    s_mov_b64 exec, -1
    s_mov_b32 s{sL}, 1""")
    k.ts(5)
    k("s_cmp_ge_u32 s72, 32"); k.br("scc1", "Z_next")
    k(f"s_cmp_eq_u32 s{sHW}, 1"); k.br("scc1", "C_start")
    k(f"s_cmp_eq_u32 s{sHW}, 2"); k.br("scc1", "Z_next")
    k.wait([FULL], 11, 5, sleep=2)
    k(f"""v_bfe_u32 v2, v0, 4, 5
    v_mul_u32_u24 v2, 36, v2
    v_lshrrev_b32 v3, 9, v0
    v_lshl_add_u32 v3, v3, 4, v2
    v_lshrrev_b32 v4, 2, v0
    v_min_u32 v4, 20, v4
    s_mov_b32 s74, {W_QS}
    s_mov_b32 s75, {W_PF}
    s_lshr_b32 s76, s{sSEL}, 6
    s_cmp_eq_u32 s76, s72
    s_cselect_b32 s75, s75, s74""")
    k.label("Q_poll")
    k(f"""buffer_load_dwordx4 v[8:11], v3, {WS}, s74 offen sc1
    buffer_load_dword v12, v2, {WS}, s74 offen offset:32 sc1
    buffer_load_dword v13, v4, {WS}, s75 offen sc1
    s_waitcnt vmcnt(0)""")
    k.umax(5, rng(8, 6))
    k("v_cmp_eq_u32 vcc, -1, v5")
    k.retry("Q_poll", 4)
    k.ts(6)
    k(f"""v_mov_b32 v13, 0
    s_mov_b32 exec_lo, 0
    v_mov_b32 v12, 0
    s_mov_b32 exec_lo, -1
    s_lshl_b32 s18, s72, 1
    s_add_u32 s19, s18, 2
    s_mov_b32 s73, {KVS}""")
    safe_tiles(k, 8, 12, 60, 76, 16, 20, 28, 30, 32, 34, 35, 18, 19, 73)
    k(f"""s_mul_i32 s74, s72, 3072
    s_add_u32 s74, s74, {W_SP}
    v_mov_b32 v71, v30""")
    for i in range(3): k(f"buffer_store_dwordx4 {v(60+4*i,4)}, v0, {WS}, s74 offen offset:{1024*i} sc1")
    k.ts(7)
    k.jmp("Z_next")
    k.label("C_start")
    k(f"""v_bfe_u32 v2, v0, 4, 5
    v_mul_u32_u24 v2, 3072, v2
    v_and_b32 v3, 0x200, v0
    v_add_u32 v2, v2, v3
    s_lshl_b32 s74, s72, 4
    s_add_u32 s74, s74, {W_SP}""")
    k.label("C_poll")
    for i in range(3): k(f"buffer_load_dwordx4 {v(8+4*i,4)}, v2, {WS}, s74 offen offset:{1024*i} sc1")
    k("s_waitcnt vmcnt(0)")
    k.umax(5, rng(8, 12))
    k("v_cmp_eq_u32 vcc, -1, v5")
    k.retry("C_poll", 8)
    k.ts(6)
    k("v_mov_b32 v20, v19")
    red16(k, "v_max_f32", 20)
    redx(k, "v_max_f32", [20], [21])
    k("v_sub_f32 v20, v19, v20\nv_exp_f32 v20, v20")
    for i in range(11): k(f"v_mul_f32 v{8+i}, v{8+i}, v20")
    red16(k, "v_add_f32", *rng(8, 11))
    for i in range(11): k(f"v_mov_b32 v{24+i}, v{8+i}")
    for i in range(11): k(f"v_permlane16_swap_b32 v{8+i}, v{24+i}")
    for i in range(11): k(f"v_add_f32 v{8+i}, v{8+i}, v{24+i}")
    k("v_mov_b32 v20, v18\nv_permlane32_swap_b32 v18, v20\nv_rcp_f32 v18, v18")
    for i in range(10): k(f"v_mul_f32 v{8+i}, v{8+i}, v18")
    for i in range(5): k(f"v_cvt_pk_bf16_f32 v{24+i}, v{8+2*i}, v{9+2*i}")
    row_base(k, 74, W_GRP + G_OX + 73728)
    k(f"""s_lshr_b32 s75, s72, 2
    s_mul_i32 s75, s75, 2304
    s_add_u32 s74, s74, s75
    s_and_b32 s75, s72, 3
    s_lshl_b32 s76, s75, 9
    s_add_u32 s76, s76, s74
    s_lshl_b32 s75, s75, 2
    s_add_u32 s75, s75, s74
    v_lshrrev_b32 v3, 1, v3
    s_mov_b32 exec_lo, 1
    s_mov_b32 exec_hi, 1
    buffer_store_dwordx4 v[24:27], v3, {WS}, s76 offen sc1
    s_mov_b32 exec_hi, 0
    buffer_store_dword v28, off, {WS}, s75 offset:2048 sc1
    s_mov_b64 exec, -1""")
    k.ts(7)
    k.label("Z_next")
    k.tscopy()
    k.jmp("Z_layer")
    k.label("R_start")
    k(f"""s_sub_u32 s{sU}, 4, s{sHW}
    s_cmp_eq_u32 s{sG}, 30
    s_cselect_b32 s{sU}, s{sHW}, s{sU}
    s_cselect_b32 s74, 7, 2
    s_cmp_eq_u32 s{sHW}, s74""")
    k.br("scc1", "end")
    k(f"s_cmp_eq_u32 s{sU}, 4"); k.br("scc1", "R_have")
    tr_addr(k, 2, 0, 5)
    k(f"s_lshl_b32 s74, s{sU}, 5\nv_xor_b32 v2, s74, v2")
    for st in range(3):
        for i in range(6): k(TR(HW + 24 * st + 4 * i, 2, 4096 * i))
        k(f"v_add_u32 v2, {6*4096}, v2\ns_waitcnt lgkmcnt(0)")
    k(f"""v_lshrrev_b32 v2, 8, v0
    v_lshlrev_b32 v2, 4, v2
    s_lshl_b32 s74, s{sU}, 6
    s_add_u32 s74, s74, {L_CS}
    v_add_u32 v2, s74, v2
    ds_read_b128 {v(HCS,4)}, v2""")
    k.label("R_have")
    k.wait([FULL], 11, 5, sleep=8)
    read_sel(k, 5)
    k(f"s_mov_b32 s74, {W_X2R}")
    rowload(k, 4, 74, 4)
    k.ts(4)
    rowdot(k)
    k(f"""v_lshrrev_b32 v3, 8, v0
    v_mov_b32 v6, {f32bits(QSCALE)}
    s_cmp_eq_u32 s{sU}, 4
    s_cselect_b32 s75, 0, 0x00010001
    s_mov_b32 exec_hi, s75""")
    for r in range(4): k(f"v_mul_f32 v{24+r}, v{24+r}, v6")
    k(f"""s_mov_b32 exec_hi, -1
    v_cvt_pk_bf16_f32 v8, v24, v25
    v_cvt_pk_bf16_f32 v9, v26, v27
    v_lshlrev_b32 v2, 3, v3
    s_lshl_b32 s74, s{sU}, 5
    s_add_u32 s74, s74, s{sJ144}
    s_add_u32 s74, s74, {W_QS}
    s_mov_b32 exec_lo, 0x00010001
    s_mov_b32 exec_hi, s75
    buffer_store_dwordx2 v[8:9], v2, {WS}, s74 offen sc1
    s_cmp_lg_u32 s{sU}, 4""")
    k.br("scc1", "end")
    k(f"s_cmp_ge_u32 s{sJ}, 6"); k.br("scc1", "end")
    k(f"""s_lshr_b32 s77, s{sSEL}, 7
    s_mul_i32 s77, s77, {QUAD}
    s_add_u32 s77, s77, {KVS}
    s_bfe_u32 s78, s{sSEL}, 0x20005
    s_and_b32 s18, s{sSEL}, 31
    s_mov_b32 exec_lo, 0
    s_mov_b32 exec_hi, 0x00010001
    v_and_b32 v3, 1, v3
    s_cmp_eq_u32 s{sJ}, 4""")
    k.br("scc1", "R_kb")
    k(f"s_cmp_ge_u32 s{sJ}, 2"); k.br("scc1", "R_v")
    k(f"""s_lshl_b32 s78, s78, 10
    s_add_u32 s77, s77, s78
    s_lshl_b32 s78, s{sJ}, 9
    s_add_u32 s77, s77, s78
    s_lshl_b32 s78, s18, 4
    s_add_u32 s77, s77, s78
    v_lshlrev_b32 v3, 3, v3
    buffer_store_dwordx2 v[8:9], v3, {WS}, s77 offen sc1""")
    k.jmp("R_done")
    k.label("R_kb")
    k(f"""s_lshl_b32 s78, s78, 7
    s_add_u32 s77, s77, s78
    s_lshl_b32 s78, s18, 2
    s_add_u32 s77, s77, s78
    s_add_u32 s77, s77, 8960
    s_mov_b32 exec_hi, 0x00010000
    buffer_store_dword v9, off, {WS}, s77 sc1""")
    k.jmp("R_done")
    k.label("R_v")
    k(f"""s_mul_i32 s78, s78, 1216
    s_add_u32 s77, s77, s78
    s_lshr_b32 s78, s18, 4
    s_mul_i32 s78, s78, 608
    s_add_u32 s77, s77, s78
    s_bfe_u32 s78, s18, 0x10002
    s_mul_i32 s78, s78, 304
    s_add_u32 s77, s77, s78
    s_and_b32 s78, s18, 8
    s_add_u32 s77, s77, s78
    s_and_b32 s78, s18, 3
    s_lshl_b32 s78, s78, 1
    s_add_u32 s77, s77, s78
    s_add_u32 s77, s77, 4096
    s_cmp_eq_u32 s{sJ}, 5""")
    k.br("scc1", "R_v5")
    k(f"""s_and_b32 s78, s{sJ}, 1
    s_lshl_b32 s78, s78, 6
    s_add_u32 s77, s77, s78
    v_lshlrev_b32 v3, 7, v3
    buffer_store_short v8, v3, {WS}, s77 offen sc1
    buffer_store_short_d16_hi v8, v3, {WS}, s77 offen offset:16 sc1
    buffer_store_short v9, v3, {WS}, s77 offen offset:32 sc1
    buffer_store_short_d16_hi v9, v3, {WS}, s77 offen offset:48 sc1""")
    k.jmp("R_done")
    k.label("R_v5")
    k(f"""s_mov_b32 exec_hi, 0x00010000
    buffer_store_short v9, off, {WS}, s77 offset:256 sc1
    buffer_store_short_d16_hi v9, off, {WS}, s77 offset:272 sc1""")
    k.label("R_done")
    k(f"""s_lshl_b32 s74, s{sJ}, 2
    s_add_u32 s74, s74, {W_PF}
    s_mov_b64 exec, 1
    v_mov_b32 v2, 1
    s_waitcnt vmcnt(0)
    buffer_store_dword v2, off, {WS}, s74 sc1""")
    k.ts(5)
    k.jmp("end")

NAME = "interleave_layers__grouped_kv_mqa__moe_arch_mod__prompt"
def build():
    k, late = build_kernel(NAME + "_kernel")
    role_B(k, late)
    role_H(k, late)
    role_Hw(k, late)
    for f in late: f()
    k.label("end")
    if Kern.TS:
        k(f"""s_waitcnt vmcnt(0) lgkmcnt(0)
        s_memrealtime s[100:101]
        s_getreg_b32 s74, hwreg(HW_REG_XCC_ID)
        s_getreg_b32 s75, hwreg(HW_REG_HW_ID)
        s_mul_i32 s76, s2, 12
        s_add_u32 s76, s76, s{sW}
        s_lshl_b32 s76, s76, 7
        s_mov_b64 exec, 1
        s_waitcnt lgkmcnt(0)""")
        for q in range(4):
            for i in range(4): k(f"v_mov_b32 v{8+4*q+i}, s{80+4*q+i}")
            k(f"buffer_store_dwordx4 {v(8+4*q,4)}, off, s[96:99], s76 offset:{16*q}")
        k(f"v_mov_b32 v24, s100\nv_mov_b32 v25, s74\nv_mov_b32 v26, s75\nv_mov_b32 v27, s{sBUD}")
        k("buffer_store_dwordx4 v[24:27], off, s[96:99], s76 offset:64")
        k("v_mov_b32 v28, s32\nv_mov_b32 v29, s33\nv_mov_b32 v30, s30\nv_mov_b32 v31, s31")
        k("buffer_store_dwordx4 v[28:31], off, s[96:99], s76 offset:80")
    k.label("exit")
    k("s_endpgm")
    n = k.pad(verbose=(lambda i, t, w: print(f"pad {w}: {t}", file=sys.stderr)) if "padv" in OPT else None)
    hdr = open(f"cdna_kernels/{NAME}.s.ref").read().split("\n")
    hdr = [l for l in hdr if l.startswith(";") and "@launch" not in l and "Override" not in l and "grid=ceil" not in l]
    out = "\n".join(hdr) + "\n; @launch grid=(256,1,1) block=(768,1,1) lds=163840\n"
    out += '.amdgcn_target "amdgcn-amd-amdhsa--gfx950"\n.text\n' + k.body() + '.section .rodata,"a"\n' + k.desc()
    return out

if __name__ == "__main__":
    import argparse
    ap = argparse.ArgumentParser()
    ap.add_argument("-o", default="p.s")
    ap.add_argument("--ts", action="store_true")
    ap.add_argument("--opt", default="")
    ap.add_argument("--budget", type=int, default=BUDGET)
    a = ap.parse_args()
    Kern.TS = a.ts
    OPT.update(a.opt.split(","))
    BUDGET = a.budget
    open(a.o, "w").write(build())
```

```python
import sys, math
from asm2 import *

D = 576
ROWB = 1152
XB = 2048 * ROWB
EPS = 1e-5
QSCALE = math.log2(math.e) / math.sqrt(18)
QUAD, SUPER = 9472, 18944
L_W4, L_W5B, RING = 0, 73728, 82944
L_W5A = RING + 2 * SUPER
L_WO5 = L_W5A + 9216
L_QST = RING + 3 * SUPER
L_RED = RING + 36864
REDW = 2432
STG = 158720
L_SYNC, L_CS, L_WRS, L_SW, L_TOK, L_FT = STG, STG + 256, STG + 576, STG + 736, STG + 768, STG + 1792
PROG, RST1, FULL, F0, WF, W5A, W5B_, WO5, WOE, WOL, QRDY = 0, 8, 11, 12, 16, 20, 21, 22, 23, 24, 28
CSF, RST0, TOKF, OPD, SEL0, FRD = 32, 37, 38, 42, 46, 48
SAMEX, RALL, KVP = F0, F0 + 1, 52
BIG = 64
W_KV, KVS = 0, 0x28000
W_FL, FLS = 0x50000, 0x8000
W_KEY, KEYS = 0x60000, 0x4000
W_GRP, GB = 0x100000, 73728 + 8 * 32768
TS_ = 18432
G_OX, G_XX, G_ST, G_CD = 0, 147456, 294912, 311296
W_GLB = 0xB40000
YPS = 144 * 192 * 16
W_YP = W_GLB
W_X2R = W_GLB + 2 * YPS
W_QS = W_X2R + 2048
W_PF = W_QS + 2048
W_SP = W_PF + 1024
W_OS = W_SP + 32 * 3072
assert W_OS + TS_ <= W_GLB + 256 * 4096 and W_GRP + 32 * GB <= W_GLB
WS_SIZE = 0x1000000
OOB = 0x7f000000
FLC = 0x9E3779B9
sW, sG, sJ, sT, sC = 3, 4, 5, 6, 7
P_X, P_WQ, P_WK, P_WV, P_WO, P_WR, P_WG, P_WU, P_WD, P_OUT, P_DBG, P_WS = 8, 10, 12, 14, 16, 20, 22, 24, 26, 28, 30, 32
sBUD, sL = 34, 35
WS, RX, RWQ, RWO, ROUT, RWR, RWD = "s[36:39]", "s[40:43]", "s[44:47]", "s[48:51]", "s[52:55]", "s[56:59]", "s[60:63]"
sJ144, sGRP, sTIL, sSEL, sROT, sTHR, sLIVE, sNEED, sPRG, sX = 64, 65, 66, 67, 68, 69, 70, 71, 72, 73
sSAME = 10
RWG, RWU = "s[20:23]", "s[24:27]"
BUDGET = 2000000
OPT = set()

class G(Kern):
    def ts(self, i):
        if Kern.TS:
            self("s_memrealtime s[100:101]\ns_waitcnt lgkmcnt(0)")
            self(f"s_mov_b32 s{80+i}, s100")
    def tscopy(self):
        if Kern.TS and "tss" not in OPT:
            for i in range(2, 9): self(f"s_mov_b32 s{87+i}, s{80+i}")
    def tss(self, i):
        if "tss" in OPT: self.ts(i)
    def post(self, word, val, vt, dyn=None):
        if dyn is None:
            self(f"s_lshl_b64 exec, 1, {word}")
        else:
            self(f"s_add_u32 s79, s{dyn}, {word}\ns_lshl_b64 exec, 1, s79")
        self(f"v_mov_b32 v{vt}, {val}")
        self(f"ds_write_b32 v1, v{vt}\ns_mov_b64 exec, -1")
    def wait(self, words, val, vt, sleep=0, smask=None, hi=None):
        if smask is None:
            hi = words[0] >= 32
            assert all((w >= 32) == hi for w in words)
            m = hex(sum(1 << (w & 31) for w in words))
        else:
            m = f"s{smask}"
        a, b = self.uid("w"), self.uid("wd")
        self.label(a)
        self(f"ds_read_b32 v{vt}, v1\ns_waitcnt lgkmcnt(0)\nv_cmp_gt_u32 vcc, {val}, v{vt}")
        self(f"s_and_b32 s79, {'vcc_hi' if hi else 'vcc_lo'}, {m}\ns_cbranch_scc0 {self.L(b)}")
        if sleep: self(f"s_sleep {sleep}")
        self(f"s_sub_i32 s{sBUD}, s{sBUD}, {1 + 4 * sleep}\ns_cmp_gt_i32 s{sBUD}, 0\ns_cbranch_scc1 {self.L(a)}")
        self.label(b)
    def retry(self, lab, sleep=0):
        b = self.uid("rd")
        self(f"s_cbranch_vccz {self.L(b)}")
        if sleep: self(f"s_sleep {sleep}")
        self(f"s_sub_i32 s{sBUD}, s{sBUD}, 16\ns_cmp_gt_i32 s{sBUD}, 0\ns_cbranch_scc1 {self.L(lab)}")
        self.label(b)
    def umax(self, dst, rs):
        rs = list(rs)
        if len(rs) == 1: self(f"v_mov_b32 v{dst}, v{rs[0]}"); return
        if len(rs) == 2: self(f"v_max_u32 v{dst}, v{rs[0]}, v{rs[1]}"); return
        self(f"v_max3_u32 v{dst}, v{rs[0]}, v{rs[1]}, v{rs[2]}")
        rs = rs[3:]
        while rs:
            if len(rs) == 1: self(f"v_max_u32 v{dst}, v{dst}, v{rs[0]}"); rs = []
            else: self(f"v_max3_u32 v{dst}, v{dst}, v{rs[0]}, v{rs[1]}"); rs = rs[2:]
    def st2(self, late, txt):
        a, b = self.uid("sl"), self.uid("sb")
        self(f"s_cmp_eq_u32 s{sSAME}, 0\ns_cbranch_scc1 {self.L(a)}")
        self(txt.replace(" SC", "" if "nosame" not in OPT else " sc1"))
        self.label(b)
        def slow():
            self.label(a)
            self(txt.replace(" SC", " sc1"))
            self.jmp(b)
        late.append(slow)
    def br(self, cond, lab): self(f"s_cbranch_{cond} {self.L(lab)}")
    def jmp(self, lab): self(f"s_branch {self.L(lab)}")

def rng(a, n): return list(range(a, a + n))
def MF16(acc, a, b, c=None): return f"v_mfma_f32_16x16x32_bf16 {v(acc,4)}, {v(a,4)}, {v(b,4)}, " + (v(acc, 4) if c is None else c)
def M32(acc, a, b, c=None): return f"v_mfma_f32_32x32x16_bf16 {v(acc,16)}, {v(a,4)}, {v(b,4)}, " + (v(acc, 16) if c is None else c)
def M8(acc, a, b): return f"v_mfma_f32_32x32x8_bf16 {v(acc,16)}, {v(a,2)}, {v(b,2)}, {v(acc,16)}"
def M2B(acc, a, b): return f"v_mfma_f32_32x32x4_2b_bf16 {v(acc,32)}, {v(a,2)}, {v(b,2)}, 0"
def TR(dst, a, off): return f"ds_read_b64_tr_b16 {v(dst,2)}, v{a} offset:{off}\nds_read_b64_tr_b16 {v(dst+2,2)}, v{a} offset:{off+512}"

def tr_addr(k, dst, base, t):
    k(f"""v_and_b32 v{dst}, 0x300, v0
    v_lshlrev_b32 v{dst}, 2, v{dst}
    v_and_b32 v{t}, 0xc0, v0
    v_lshl_add_u32 v{dst}, v{t}, 1, v{dst}
    v_bfe_u32 v{t}, v0, 4, 2
    v_lshl_add_u32 v{dst}, v{t}, 3, v{dst}
    v_lshrrev_b32 v{t}, 2, v0
    v_and_b32 v{t}, 0x60, v{t}
    v_add_u32 v{dst}, v{dst}, v{t}""")
    if base: k(f"v_add_u32 v{dst}, {base}, v{dst}")

def dma_col(k, dst, t):
    k(f"""v_lshrrev_b32 v{t}, 3, v0
    v_and_b32 v{t}, 0x20, v{t}
    v_and_b32 v{dst}, 0x70, v0
    v_xor_b32 v{dst}, v{dst}, v{t}""")

def wo_setup(k, va, vb, vc, t):
    dma_col(k, vc, t)
    k(f"""v_lshrrev_b32 v{t}, 7, v0
    v_mul_u32_u24 v{va}, {ROWB}, v{t}
    v_add_u32 v{va}, v{va}, v{vc}
    v_xor_b32 v{vb}, 64, v{va}
    v_lshrrev_b32 v{t}, 8, v0
    v_mul_u32_u24 v{t}, {18*ROWB}, v{t}
    v_add_u32 v{vc}, v{vc}, v{t}
    v_bfe_u32 v{t}, v0, 7, 1
    v_mul_u32_u24 v{t}, {ROWB}, v{t}
    v_add3_u32 v{vc}, v{vc}, v{t}, 0
    v_add_u32 v{vc}, {16*ROWB}, v{vc}""")
def wo_dma(k, va, vb, vc, sso, sm0):
    for i in range(9):
        ro = ((i >> 1) * 18 + 8 * (i & 1)) * ROWB if i < 8 else 0
        k(f"s_add_u32 m0, s{sm0}, {1024*i}\ns_add_u32 s79, s{sso}, {ro}")
        k(f"buffer_load_dwordx4 v{(va, vb)[i & 1] if i < 8 else vc}, {RWO}, s79 offen lds")

def stats_fin(k, s1, s2):
    k(f"""v_mul_f32 v{s1}, {f32bits(1.0/D)}, v{s1}
    v_mul_f32 v{s2}, {f32bits(1.0/D)}, v{s2}
    v_fma_f32 v{s2}, -v{s1}, v{s1}, v{s2}
    v_max_f32 v{s2}, 0, v{s2}""")

B0, SL, ACC, RES = 8, 80, 108, 132
def b_loads(k, s0, s1=18, va=0):
    for st in range(s0, s1):
        k(f"buffer_load_dwordx4 {v(B0+4*st,4)}, v{va}, {WS}, s{74 + st // 4} offen offset:{1024*(st%4)} sc1")
def b_bases(k, off):
    for q in range(1, 5): k(f"s_add_u32 s{74+q}, s74, {4096*q}")

def check_stub(k, q, va, stubs):
    lab = k.uid("cg"); stub = k.uid("cr")
    k(f"v_cmp_lt_u32 vcc, s{sTHR}, v7")
    k.br("vccnz", stub)
    k.label(lab)
    stubs.append((stub, lab, 3 * q, va))
def emit_stubs(k, stubs):
    def f():
        for stub, lab, s0, va in stubs:
            k.label(stub)
            k(f"s_waitcnt vmcnt(0)\ns_sub_i32 s{sBUD}, s{sBUD}, 16\ns_cmp_gt_i32 s{sBUD}, 0\ns_cselect_b32 s{sTHR}, s{sTHR}, -1")
            b_loads(k, s0, s0 + 3, va)
            k("s_waitcnt vmcnt(0)")
            k.umax(7, rng(B0 + 4 * s0, 12))
            k(f"v_cmp_lt_u32 vcc, s{sTHR}, v7")
            k.br("vccnz", stub)
            b_loads(k, s0 + 3, 18, va)
            k.jmp(lab)
    return f
def gemm(k, kind, pre_issued=0, mid=None, hooks=None):
    items = []
    for st in range(18):
        for t in range(4):
            items.append((st, ('l', 2 + t, (st if st < 16 else st - 2) * 4096), ACC + 4 * t))
        if kind == "op":
            items.append((st, ('r', RES + 4 * (st >> 1)), ACC + 16 + 4 * (st & 1)))
    lds = [i for i, it in enumerate(items) if it[1][0] == 'l']
    slot = {i: SL + 4 * ((n + 3) % 7) for n, i in enumerate(lds)}
    state = dict(n=0)
    def issue():
        n = state['n']
        if n >= len(lds): return
        it = items[lds[n]]
        first = n == 0 or items[lds[n-1]][0] != it[0]
        if first and it[0] in hooks: hooks[it[0]]()
        if first and it[0] == 16:
            for t in range(4): k(f"v_add_u32 v{2+t}, 8192, v{2+t}")
        k(TR(slot[lds[n]], it[1][1], it[1][2]))
        state['n'] = n + 1
    for _ in range(pre_issued): issue()
    if mid: mid()
    while state['n'] < 7: issue()
    stubs = []
    pend = []
    for i, (st, src, acc) in enumerate(items):
        if kind == "op":
            q, r = divmod(i, 15)
            if i == 0:
                k("s_waitcnt vmcnt(15)")
                k.umax(7, rng(B0, 12))
            if r == 0: check_stub(k, q, 6, stubs)
        if src[0] == 'l':
            n = lds.index(i)
            k(f"s_waitcnt lgkmcnt({2 * (state['n'] - 1 - n)})")
            a = slot[i]
        else:
            a = src[1]
        z = "0" if (kind == "q" and st == 0) else None
        k(MF16(acc, a, B0 + 4 * st, z))
        if src[0] == 'l': issue()
        if kind == "op" and q < 5 and r >= 9:
            b = B0 + 12 * (q + 1); m = r - 9
            if m == 0: k(f"s_waitcnt vmcnt({12 - 3*q})\nv_max_u32 v7, v{b}, v{b+1}")
            else: k(f"v_max3_u32 v7, v7, v{b+2*m}, v{b+2*m+1}")
    return emit_stubs(k, stubs)

def safe_tiles(k, QA, QBP, O, S, K, V, KB, M, T, aV, aKb, s_kt, s_end, s_img):
    k(f"""v_lshrrev_b32 v{T}, 9, v0
    v_mul_u32_u24 v{T}, 304, v{T}
    v_and_b32 v{aKb}, 0x1f0, v0
    v_add_u32 v{aV}, v{T}, v{aKb}
    v_cmp_gt_u32 vcc, {19*16}, v{aKb}
    v_mov_b32 v{T}, {OOB}
    v_cndmask_b32 v{aV}, v{T}, v{aV}, vcc
    v_lshrrev_b32 v{aKb}, 2, v{aKb}
    v_mov_b32 v{M}, {f32bits(-3e38)}
    v_mov_b32 v{KB+1}, 0""")
    for i in range(16): k(f"v_mov_b32 v{O+i}, 0")
    lp = k.uid("st")
    k.label(lp)
    k(f"""s_lshr_b32 s76, s{s_kt}, 2
    s_mul_i32 s76, s76, {QUAD}
    s_add_u32 s76, s76, s{s_img}
    s_and_b32 s77, s{s_kt}, 3
    s_lshl_b32 s78, s77, 10
    s_add_u32 s78, s78, s76
    buffer_load_dwordx4 {v(K,4)}, v0, {WS}, s78 offen sc1
    s_lshl_b32 s78, s77, 7
    s_add_u32 s78, s78, s76
    s_add_u32 s78, s78, 8960
    buffer_load_dword v{KB}, v{aKb}, {WS}, s78 offen sc1
    s_mul_i32 s78, s77, 1216
    s_add_u32 s78, s78, s76
    s_add_u32 s78, s78, 4096
    buffer_load_dwordx4 {v(V,4)}, v{aV}, {WS}, s78 offen sc1
    buffer_load_dwordx4 {v(V+4,4)}, v{aV}, {WS}, s78 offen offset:608 sc1
    s_waitcnt vmcnt(2)""")
    k(M32(S, K, QA, "0"))
    k(M8(S, KB, QBP))
    k(f"v_max3_f32 v{T}, v{S}, v{S+1}, v{M}")
    for i in range(2, 16, 2): k(f"v_max3_f32 v{T}, v{S+i}, v{S+i+1}, v{T}")
    k(f"""v_mov_b32 v{T+1}, v{T}
    v_permlane32_swap_b32 v{T}, v{T+1}
    v_max_f32 v{T}, v{T}, v{T+1}
    v_sub_f32 v{T+1}, v{M}, v{T}
    v_exp_f32 v{T+1}, v{T+1}
    v_mov_b32 v{M}, v{T}""")
    for i in range(16): k(f"v_sub_f32 v{S+i}, v{S+i}, v{M}")
    for i in range(16): k(f"v_exp_f32 v{S+i}, v{S+i}")
    for i in range(11): k(f"v_mul_f32 v{O+i}, v{O+i}, v{T+1}")
    for i in range(8): k(f"v_cvt_pk_bf16_f32 v{S+i}, v{S+2*i}, v{S+2*i+1}")
    k("s_waitcnt vmcnt(0)")
    k(M32(O, V, S))
    k(M32(O, V + 4, S + 4))
    k(f"s_add_u32 s{s_kt}, s{s_kt}, 1\ns_cmp_lt_u32 s{s_kt}, s{s_end}")
    k.br("scc1", lp)
    k("s_nop 8")

def poll_flags(k, r, soff, n=1):
    for i in range(n):
        if i: k(f"s_add_u32 s79, s{soff}, {4096*i}")
        k(f"buffer_load_dwordx4 {v(r+4*i,4)}, v5, {WS}, s{soff if i == 0 else 79} offen sc1")
def check_flags(k, r, n, t):
    for i in range(2 * n):
        k(f"v_sub_u32 v{r+2*i}, v{r+2*i}, v{r+2*i+1}\nv_subrev_u32 v{r+2*i}, {FLC}, v{r+2*i}")
    k.umax(t, [r + 2 * i for i in range(2 * n)])
    k(f"v_cmp_lt_u32 vcc, 7, v{t}")

def read_sel(k, vt, layer_sreg=None):
    if layer_sreg is None: k(f"v_readlane_b32 s73, v{vt}, {SEL0}")
    else: k(f"s_add_u32 s79, s{layer_sreg}, {SEL0}\nv_readlane_b32 s73, v{vt}, s79")
    k(f"s_and_b32 s{sSEL}, s73, 0x7ff\ns_xor_b32 s{sSEL}, s{sSEL}, 0x7ff")

QA, QB, KB_, KK, V0, V1, SS, OO = 8, 16, 20, 24, 28, 32, 36, 100
def attn_loop(k):
    ops = []
    def E(s, a, b): return [f"v_exp_f32 v{s+j}, v{s+j}" for j in range(a, b)]
    def CV(p, s, a, b): return [f"v_cvt_pk_bf16_f32 v{p+j}, v{s+2*j}, v{s+1+2*j}" for j in range(a, b)]
    def oK(u): return ((u >> 2) & 3) * SUPER + (u & 3) * 1024
    def oV(u, mf): return ((u >> 2) & 3) * SUPER + (u & 3) * 1216 + mf * 608
    def oKb(u): return ((u >> 2) & 3) * SUPER + (u & 3) * 128
    def RD(dst, a, off, tag): return [('ds', f"ds_read_b128 {v(dst,4)}, v{a} offset:{off}", tag)]
    def N(*tags): return [('need', t) for t in tags]
    slow = []
    for u in range(16):
        sb, sn = (SS, SS + 32) if u % 2 == 0 else (SS + 32, SS)
        a, b = sb, sb + 16
        un = u + 1
        kb = KB_ + 2 * ((un & 3) >> 1); qb = QB + 2 * (un & 1)
        o = E(a, 0, 2) + [M32(OO + 16, V1, sn + 24)] + RD(V1, 3, oV(u, 1), 'v1')
        if u % 4 == 2: o += [('ds', "ds_read_b32 v5, v1", 'full')]
        if u % 4 == 3:
            o += [('ds', f"ds_read_b32 v{KB_+2}, v4 offset:{oKb(u+3)}", 'kb2'), ('ds', f"ds_read_b32 v{KB_+3}, v4 offset:{oKb(u+4)}", 'kb3')]
        o += E(a, 2, 5) + N(f"kb{un&3}") + [M2B(sn, kb, qb)] + E(a, 5, 8) + CV(a, a, 0, 4) + E(a, 8, 11)
        o += N('v0') + [M32(OO, V0, a)] + E(a, 11, 16) + CV(a + 8, a + 8, 0, 2)
        o += N('k') + [M32(sn, KK, QA)] + CV(a + 8, a + 8, 2, 4) + E(b, 0, 4)
        o += N('v1') + [M32(OO, V1, a + 8)]
        if u % 4 == 3:
            o += [f"v_mov_b32 v5, s{sPRG}", f"s_lshl_b64 exec, 1, s{sW}", ('ds', "ds_write_b32 v1, v5", 'pw'), "s_mov_b64 exec, -1", f"s_add_u32 s{sPRG}, s{sPRG}, 1"]
        o += E(b, 4, 8) + CV(b, b, 0, 2)
        if u % 4 == 2:
            sl, bk = k.uid("slow"), k.uid("back")
            slow.append((sl, bk))
            o += N('full') + [f"v_cmp_gt_u32 vcc, s{sPRG}, v5", f"s_bitcmp1_b32 vcc_lo, {FULL}", f"s_cbranch_scc1 {k.L(sl)}", f"{k.L(bk)}:"]
            if "nobal" not in OPT:
                pl = k.uid("pr")
                o += [f"s_bitcmp1_b32 vcc_lo, s{sX}", f"s_cbranch_scc0 {k.L(pl)}", "s_setprio 0", f"{k.L(pl)}:"]
        def up():
            pl = k.uid("pr")
            return [f"s_bitcmp1_b32 vcc_lo, s{sX}", f"s_cbranch_scc0 {k.L(pl)}", "s_setprio 2", f"{k.L(pl)}:"]
        if u % 4 == 3 and "nobal" not in OPT and "bal2" not in OPT: o += up()
        o += [M32(sn + 16, KK, QA + 4)] + RD(KK, 2, oK(u + 2), 'k')
        if u % 4 == 2:
            o += [('ds', f"ds_read_b32 v{KB_}, v4 offset:{oKb(u+2)}", 'kb0'), ('ds', f"ds_read_b32 v{KB_+1}, v4 offset:{oKb(u+3)}", 'kb1')]
        o += CV(b, b, 2, 4) + E(b, 8, 12)
        o += [M32(OO + 16, V0, b)] + RD(V0, 3, oV(un, 0), 'v0') + E(b, 12, 16) + CV(b + 8, b + 8, 0, 4)
        if u % 4 == 3 and "bal2" in OPT: o += up()
        ops += o
    n = len(ops)
    out = []
    known = 99
    for pas in range(2):
        out = []
        for i, o in enumerate(ops):
            if isinstance(o, str): out.append(o)
            elif o[0] == 'ds': out.append(o[1]); known += 1
            else:
                c = 0; j = i - 1
                while True:
                    p = ops[j % n]
                    if not isinstance(p, str) and p[0] == 'ds':
                        if p[2] == o[1]: break
                        c += 1
                    j -= 1
                if c < known:
                    out.append(f"s_waitcnt lgkmcnt({c})"); known = c
    k.align(6)
    k.label("aloop")
    for o in out: k(o)
    k(f"s_bitcmp1_b32 s{sPRG}, 2")
    k.br("scc1", "aloop")
    def emit_slow():
        for sl, bk in slow:
            k.label(sl)
            if Kern.TS: k("s_add_u32 s30, s30, 1")
            k.wait([FULL], f"s{sPRG}", 5)
            k.jmp(bk)
    return emit_slow

def rowload(k, shift, ssoff, sleep=0):
    k(f"""v_bfe_u32 v2, v0, 4, 4
    v_lshrrev_b32 v3, 8, v0
    v_lshl_add_u32 v3, v2, 2, v3
    v_lshlrev_b32 v3, {shift}, v3
    v_cmp_gt_u32 vcc, 2, v2
    v_add_u32 v4, {64 << shift}, v3
    v_mov_b32 v5, {OOB}
    v_cndmask_b32 v4, v5, v4, vcc
    v_mov_b32 v6, 0x3f803f80""")
    lp = k.uid("rl")
    k.label(lp)
    k(f"""buffer_load_dwordx4 v[8:11], v3, {WS}, s{ssoff} offen sc1
    buffer_load_dwordx4 v[12:15], v4, {WS}, s{ssoff} offen sc1
    v_mov_b32 v32, 0
    v_mov_b32 v33, 0
    s_waitcnt vmcnt(0)""")
    k.umax(5, rng(8, 8))
    k("v_cmp_eq_u32 vcc, -1, v5")
    k.retry(lp, sleep)
def rowstats(k):
    for i in range(8):
        k(f"v_dot2c_f32_bf16 v32, v{8+i}, v6\nv_dot2c_f32_bf16 v33, v{8+i}, v{8+i}")
    red16(k, "v_add_f32", 32, 33)
    redx(k, "v_add_f32", [32, 33], [34, 35])
    stats_fin(k, 32, 33)
    k(f"v_add_f32 v34, {f32bits(EPS)}, v33\nv_rsq_f32 v34, v34")
HW, HD, HCS = 60, 132, 56
def rowdot(k):
    k("s_mov_b32 s76, 0x00010001\ns_mov_b32 s77, 0x00010001")
    for st in range(18):
        bt = 16 + 4 * (st & 1); x = 8 if st < 16 else 12
        if st == 16: k("s_mov_b32 s76, 0x00010001\ns_mov_b32 s77, 0x00010001")
        for i in range(4): k(f"v_cndmask_b32 v{bt+i}, 0, v{x+i}, s[76:77]")
        k("s_lshl_b64 s[76:77], s[76:77], 1\ns_nop 0")
        k(MF16(24 + 4 * (st & 1), HW + 4 * st, bt, "0" if st < 2 else None))
    rowstats(k)
    for r in range(4): k(f"v_add_f32 v{24+r}, v{24+r}, v{28+r}")
    red16(k, "v_add_f32", 24, 25, 26, 27)
    for r in range(4): k(f"v_fma_f32 v{24+r}, -v32, v{HCS+r}, v{24+r}")
    for r in range(4): k(f"v_mul_f32 v{24+r}, v{24+r}, v34")
def row_base(k, dst, region):
    k(f"""s_lshr_b32 s{dst}, s{sSEL}, 6
    s_mul_i32 s{dst}, s{dst}, {GB}
    s_bfe_u32 s79, s{sSEL}, 0x20004
    s_mul_i32 s79, s79, {TS_}
    s_add_u32 s{dst}, s{dst}, s79
    s_and_b32 s79, s{sSEL}, 15
    s_lshl_b32 s79, s79, 4
    s_add_u32 s{dst}, s{dst}, s79
    s_add_u32 s{dst}, s{dst}, {region}""")

def cand_base(k, dst):
    k(f"""s_lshr_b32 s{dst}, s{sSEL}, 6
    s_mul_i32 s{dst}, s{dst}, {GB}
    s_bfe_u32 s79, s{sSEL}, 0x20004
    s_mul_i32 s79, s79, 2304
    s_add_u32 s{dst}, s{dst}, s79
    s_mul_i32 s79, s{sL}, 9216
    s_add_u32 s{dst}, s{dst}, s79
    s_add_u32 s{dst}, s{dst}, {W_GRP + G_CD}""")

def build_kernel(name):
    k = G(name, nvgpr=168, nsgpr=102)
    late = []
    if Kern.TS:
        k("s_memrealtime s[100:101]")
        for i in range(1, 16): k(f"s_mov_b32 s{80+i}, 0")
        k("s_waitcnt lgkmcnt(0)\ns_mov_b32 s80, s100")
    k(f"""s_cmp_ge_u32 s2, 256
    s_cbranch_scc1 {k.L('exit')}
    v_lshrrev_b32 v1, 6, v0
    v_and_b32 v0, 63, v0
    v_readfirstlane_b32 s{sW}, v1
    v_lshlrev_b32 v1, 2, v0
    v_add_u32 v1, {L_SYNC}, v1
    s_cmp_lg_u32 s{sW}, 11
    s_cbranch_scc1 {k.L('noinit')}
    v_subrev_u32 v2, {OPD}, v0
    v_cmp_gt_u32 vcc, 4, v2
    v_cndmask_b32 v2, 0, 1, vcc
    ds_write_b32 v1, v2
    s_waitcnt lgkmcnt(0)""")
    k.label("noinit")
    k(f"""s_load_dwordx16 s[8:23], s[0:1], 0
    s_load_dwordx8 s[24:31], s[0:1], 64
    s_load_dwordx2 s[32:33], s[0:1], 96
    v_lshlrev_b32 v0, 4, v0
    s_lshr_b32 s{sG}, s2, 6
    s_lshl_b32 s{sG}, s{sG}, 3
    s_and_b32 s{sJ}, s2, 7
    s_add_u32 s{sG}, s{sG}, s{sJ}
    s_bfe_u32 s{sJ}, s2, 0x30003
    s_and_b32 s{sT}, s{sW}, 3
    s_lshr_b32 s{sC}, s{sW}, 2
    s_mul_i32 s{sJ144}, s{sJ}, 144
    s_mul_i32 s{sGRP}, s{sG}, {GB}
    s_add_u32 s{sGRP}, s{sGRP}, {W_GRP}
    s_mul_i32 s{sTIL}, s{sT}, {TS_}
    s_add_u32 s{sTIL}, s{sTIL}, s{sGRP}
    s_mov_b32 s{sBUD}, {BUDGET}
    s_mov_b32 s{sL}, 0
    s_mov_b32 s{sSEL}, -1
    s_mov_b32 s{sROT}, 0
    s_mov_b32 s{sTHR}, -1
    s_barrier
    s_waitcnt lgkmcnt(0)""")
    k.tss(9)
    k.srd(36, P_WS, WS_SIZE); k.srd(40, P_X, XB); k.srd(44, P_WQ, D * ROWB); k.srd(48, P_WO, D * ROWB)
    k.srd(52, P_OUT, XB); k.srd(56, P_WR, ROWB); k.srd(60, P_WD, 4608 * ROWB)
    k(f"s_mov_b32 s20, s{P_WG}\ns_mov_b32 s21, s{P_WG+1}\ns_mov_b32 s22, {D*9216}\ns_mov_b32 s23, 0x00020000\ns_mov_b32 s26, {D*9216}\ns_mov_b32 s27, 0x00020000")
    if Kern.TS:
        k.srd(96, P_DBG, 0x100000)
        k("s_mov_b32 s30, 0\ns_mov_b32 s31, 0\ns_mov_b32 s32, 0\ns_mov_b32 s33, 0")
    k(f"s_cmp_eq_u32 s{sC}, 1"); k.br("scc1", "B_start")
    k(f"s_cmp_eq_u32 s{sC}, 2"); k.br("scc1", "H_start")
    dma_col(k, 2, 4)
    k(f"""v_lshrrev_b32 v4, 7, v0
    v_mul_u32_u24 v4, {ROWB}, v4
    v_add_u32 v2, v2, v4
    v_xor_b32 v3, 64, v2
    s_mul_i32 s74, s{sT}, 6144
    s_mul_i32 s75, s{sT}, {6*9216}
    s_add_u32 s75, s75, s{sJ144}""")
    for st in range(3):
        for i in range(6):
            p = 24 * st + i
            k(f"s_add_u32 m0, s74, {1024*p}\ns_add_u32 s79, s75, {9216*p}")
            k(f"buffer_load_dwordx4 v{2 + (i & 1)}, {RWQ}, s79 offen lds")
    k.tss(10)
    if "tss" in OPT: k("s_waitcnt vmcnt(17)")
    k.tss(12)
    for st in range(3):
        k(f"s_waitcnt vmcnt({12 - 6*st})")
        k.tss(13 + st)
        k.post(WF, st + 1, 4, sT)
    k.ts(1)
    k.wait([WO5], 1, 4)
    k(f"v_lshrrev_b32 v2, 1, v0\nv_add_u32 v2, {L_WO5}, v2")
    for u in range(9):
        k(TR(RES + 4 * u, 2, 1024 * u))
        if u == 4: k("s_waitcnt lgkmcnt(0)")
    k.label("A_att")
    k.ts(2)
    k.label("att")
    k(f"""s_add_u32 s74, s{sL}, 1
    s_lshl_b32 s75, {1 << QRDY}, s{sT}
    s_lshl_b32 s{sPRG}, s{sL}, 4
    s_add_u32 s{sPRG}, s{sPRG}, 1
    s_xor_b32 s{sX}, s{sW}, 4
    s_cmp_lg_u32 s{sC}, 0
    s_cselect_b32 s{sX}, {FULL}, s{sX}
    s_mul_i32 s76, s{sT}, 2560
    s_mul_i32 s77, s{sC}, 1280
    s_add_u32 s76, s76, {L_QST}
    s_sub_u32 s78, s76, s77
    s_add_u32 s78, s78, 1280
    s_add_u32 s76, s76, s77
    v_bfe_u32 v2, v0, 6, 3
    v_mul_u32_u24 v2, 160, v2
    v_bfe_u32 v3, v0, 4, 2
    v_mul_u32_u24 v3, 36, v3
    v_add_u32 v2, v2, v3
    v_lshrrev_b32 v3, 9, v0
    v_lshl_add_u32 v4, v3, 4, v2
    v_add_u32 v6, s76, v4
    v_add_u32 v7, s78, v4
    v_cmp_eq_u32 vcc, 0, v3
    v_mov_b32 v{QB+1}, 0
    v_mov_b32 v{QB+2}, 0
    v_cndmask_b32 v4, v7, v6, vcc
    v_lshlrev_b32 v2, 4, v3
    v_sub_u32 v4, v4, v2""")
    k.wait(None, "s74", 5, smask=75, hi=False)
    k(f"""ds_read2_b32 {v(QA,2)}, v6 offset0:0 offset1:1
    ds_read2_b32 {v(QA+2,2)}, v6 offset0:2 offset1:3
    ds_read2_b32 {v(QA+4,2)}, v7 offset0:0 offset1:1
    ds_read2_b32 {v(QA+6,2)}, v7 offset0:2 offset1:3
    ds_read_b32 v{QB}, v4 offset:32
    ds_read_b32 v{QB+3}, v4 offset:32
    s_mul_i32 s76, s{sC}, {QUAD}
    s_add_u32 s76, s76, {RING}
    v_add_u32 v2, s76, v0
    v_mul_u32_u24 v3, 304, v3
    v_and_b32 v6, 0x1f0, v0
    v_add3_u32 v3, v3, v6, s76
    v_add_u32 v3, 4096, v3
    v_cmp_gt_u32 vcc, {19*16}, v6
    v_mov_b32 v7, 0x30000
    v_cndmask_b32 v3, v7, v3, vcc""")
    for i in range(32): k(f"v_mov_b32 v{OO+i}, 0")
    for i in range(4): k(f"v_mov_b32 v{V1+i}, 0\nv_mov_b32 v{SS+56+i}, 0")
    k(f"""s_waitcnt lgkmcnt(0)
    v_lshrrev_b32 v4, 2, v6
    v_add_u32 v4, s76, v4
    v_add_u32 v4, 8960, v4""")
    k.post(PROG, f"s{sPRG}", 5, sW)
    k(f"s_mov_b32 s74, s{sPRG}\ns_add_u32 s{sPRG}, s{sPRG}, 1\ns_setprio 2\ns_cmp_lg_u32 s{sC}, 0")
    k.br("scc0", "att_c")
    if "noprio" not in OPT: k("s_setprio 1")
    k.label("att_c")
    k.wait([FULL], "s74", 5)
    k.ts(3)
    k(f"ds_read_b128 {v(KK,4)}, v2")
    for i in range(4): k(f"ds_read_b32 v{KB_+i}, v4 offset:{128*i}")
    k(f"ds_read_b128 {v(V0,4)}, v3\ns_waitcnt lgkmcnt(1)")
    k(M2B(SS, KB_, QB)); k(M32(SS, KK, QA)); k(M32(SS + 16, KK, QA + 4))
    k(f"ds_read_b128 {v(KK,4)}, v2 offset:1024\ns_waitcnt lgkmcnt(0)\ns_nop 8")
    late.append(attn_loop(k))
    k(M32(OO + 16, V1, SS + 56))
    k("s_setprio 3")
    k.ts(4)
    k(f"""s_sub_u32 s74, s{sPRG}, 2
    s_mul_i32 s75, s{sW}, {REDW}
    s_xor_b32 s76, s{sW}, 4
    s_lshl_b32 s77, 1, s76
    s_mul_i32 s76, s76, {REDW}
    s_add_u32 s75, s75, {L_RED}
    s_add_u32 s76, s76, {L_RED}
    v_add_u32 v2, s75, v0
    v_lshrrev_b32 v3, 1, v0
    v_lshrrev_b32 v4, 2, v0
    v_add_u32 v6, s75, v3
    v_add_u32 v7, s75, v4""")
    k.wait(rng(PROG, 8) + [RALL], "s74", 5)
    k(f"v_readlane_b32 s{sSAME}, v5, {SAMEX}")
    k(f"s_cmp_eq_u32 s{sL}, 0"); k.br("scc1", "att_nosel")
    read_sel(k, 5)
    k.label("att_nosel")
    k(f"""ds_write_b128 v2, {v(OO+16,4)}
    ds_write_b128 v2, {v(OO+20,4)} offset:1024
    s_mov_b32 exec_hi, 0
    ds_write_b64 v6, {v(OO+24,2)} offset:2048
    ds_write_b32 v7, v{OO+26} offset:2304
    s_mov_b32 exec_hi, -1
    v_add_u32 v2, s76, v0
    v_add_u32 v6, s76, v3
    v_add_u32 v7, s76, v4""")
    k.post(PROG, f"s{sPRG}", 5, sW)
    k.wait(None, f"s{sPRG}", 5, smask=77, hi=False)
    k(f"""ds_read_b128 {v(SS,4)}, v2
    ds_read_b128 {v(SS+4,4)}, v2 offset:1024
    ds_read_b64 {v(SS+8,2)}, v6 offset:2048
    ds_read_b32 v{SS+10}, v7 offset:2304
    s_add_u32 s{sPRG}, s{sPRG}, 1""")
    k.post(PROG, f"s{sPRG}", 5, sW)
    k(f"""s_mul_i32 s74, s{sL}, 73728
    s_add_u32 s74, s74, s{sTIL}
    s_mul_i32 s75, s{sJ}, 2304
    s_add_u32 s75, s75, s74
    s_lshl_b32 s76, s{sC}, 7
    s_add_u32 s75, s75, s76
    v_bfe_u32 v2, v0, 6, 3
    v_bfe_u32 v3, v0, 4, 2
    v_lshrrev_b32 v4, 9, v0
    v_lshl_add_u32 v3, v3, 1, v4
    v_lshlrev_b32 v3, 8, v3
    v_lshl_add_u32 v3, v2, 4, v3
    v_lshrrev_b32 v4, 2, v0
    s_waitcnt lgkmcnt(1)""")
    for i in range(11): k(f"v_add_f32 v{OO+i}, v{OO+i}, v{SS+i}")
    k(f"""v_mov_b32 v6, v{OO+10}
    v_mov_b32 v7, 0
    v_permlane32_swap_b32 v{OO+10}, v6""")
    for i in range(8): k(f"v_fmac_f32 v7, 0, v{OO+i}")
    k(f"""s_mov_b32 exec_hi, 0
    v_fmac_f32 v7, 0, v{OO+8}
    v_fmac_f32 v7, 0, v{OO+9}
    s_mov_b32 exec_hi, -1
    v_add_f32 v7, v7, v{OO+10}
    v_mov_b32 v6, {f32bits(2.0**40)}
    v_cmp_nle_f32 s[18:19], v7, v6
    v_cmp_nle_f32 vcc, {f32bits(2.0**-40)}, v7
    s_or_b64 vcc, vcc, s[18:19]""")
    k.br("scc1", "fallback")
    k.label("att_fin")
    k(f"v_rcp_f32 v6, v{OO+10}")
    for i in range(10): k(f"v_mul_f32 v{OO+i}, v{OO+i}, v6")
    for i in range(5): k(f"v_cvt_pk_bf16_f32 v{SS+i}, v{OO+2*i}, v{OO+2*i+1}")
    k.st2(late, f"""buffer_store_dwordx4 {v(SS,4)}, v3, {WS}, s75 offen SC
    s_mov_b32 exec_hi, 0
    buffer_store_dword v{SS+4}, v4, {WS}, s75 offen offset:2048 SC
    s_mov_b64 exec, -1""")
    k.ts(5)
    def fallback():
        k.label("fallback")
        if Kern.TS:
            k(f"s_cmp_lg_u32 s32, 0\ns_cbranch_scc1 {k.L('fb2')}\ns_add_u32 s32, s{sL}, 1\ns_mov_b64 s[30:31], vcc\ns_ff1_i32_b64 s33, vcc\nv_readlane_b32 s33, v7, s33")
            k.label("fb2")
        k(f"""v_mov_b32 v{QB+2}, v{QB}
        s_mov_b32 exec_lo, 0
        v_mov_b32 v{QB+2}, 0
        s_mov_b32 exec_lo, -1
        v_mov_b32 v{QB+3}, 0
        s_mov_b32 s18, 0
        s_mov_b32 s19, 64
        s_mul_i32 s73, s{sL}, {KVS}""")
        safe_tiles(k, QA, QB + 2, OO, SS, KK, V0, KB_, SS + 16, SS + 18, SS + 20, SS + 21, 18, 19, 73)
        k(f"v_mov_b32 v6, v{OO+10}\nv_permlane32_swap_b32 v{OO+10}, v6")
        k.jmp("att_fin")
    late.append(fallback)
    k(f"s_mov_b32 s{sTHR}, -2\ns_cmp_lg_u32 s{sC}, 0")
    k.br("scc1", "B_post")
    RS = SL
    k("s_setprio 1")
    k(f"""v_bfe_u32 v{RS+12}, v0, 4, 4
    v_lshrrev_b32 v{RS+13}, 8, v0
    s_lshl_b32 s18, s{sG}, 6
    s_lshl_b32 s19, s{sT}, 4
    s_add_u32 s18, s18, s19
    s_lshl_b32 s19, s19, 4
    v_and_b32 v5, 0xf0, v0
    v_add_u32 v5, s19, v5
    v_add_u32 v5, {L_TOK}, v5
    ds_read_b64 {v(RS+10,2)}, v5 offset:8
    s_cmp_lg_u32 s{sL}, 0""")
    k.br("scc1", "res1")
    k(f"""v_add_u32 v5, s18, v{RS+12}
    v_mul_u32_u24 v5, {ROWB}, v5
    v_lshl_add_u32 v5, v{RS+13}, 3, v5""")
    for t in range(5): k(f"buffer_load_dwordx2 {v(RS+2*t,2)}, v5, {RX}, s{sJ144} offen offset:{32*t}")
    k.jmp("res2")
    k.label("res1")
    k(f"""s_mul_i32 s19, s{sJ}, 2304
    s_add_u32 s19, s19, s{sTIL}
    s_add_u32 s19, s19, {G_XX}
    s_add_u32 s8, s{sJ144}, {W_X2R}
    s_sub_u32 s18, s{sSEL}, s18
    v_cmp_eq_u32 vcc, s18, v{RS+12}
    v_lshrrev_b32 v5, 1, v{RS+13}
    v_lshlrev_b32 v5, 8, v5
    v_lshl_add_u32 v5, v{RS+12}, 4, v5
    v_and_b32 v{RS+12}, 1, v{RS+13}
    v_lshl_add_u32 v5, v{RS+12}, 3, v5
    v_add_u32 v5, s19, v5
    v_lshlrev_b32 v{RS+13}, 3, v{RS+13}
    v_add_u32 v{RS+13}, s8, v{RS+13}
    v_mov_b32 v{RS+12}, 0x200
    v_cndmask_b32 v5, v5, v{RS+13}, vcc
    v_cndmask_b32 v{RS+12}, v{RS+12}, 32, vcc""")
    for t in range(5):
        k(f"buffer_load_dwordx2 {v(RS+2*t,2)}, v5, {WS}, 0 offen sc1")
        if t < 4: k(f"v_add_u32 v5, v5, v{RS+12}")
    k.label("res2")
    k(f"""s_lshl_b32 s18, s{sG}, 6
    s_lshl_b32 s19, s{sT}, 4
    s_add_u32 s18, s18, s19
    s_sub_u32 s18, s{sSEL}, s18
    s_sub_u32 s8, {W_OS}, s74
    v_bfe_u32 v2, v0, 4, 4
    v_cmp_eq_u32 vcc, s18, v2
    v_and_b32 v5, 0x300, v0
    v_add_u32 v5, s8, v5
    v_cndmask_b32 v6, v0, v5, vcc
    s_waitcnt lgkmcnt(0)
    v_cndmask_b32 v{RS+10}, v{RS+10}, 1.0, vcc
    v_cndmask_b32 v{RS+11}, v{RS+11}, 0, vcc""")
    b_bases(k, 0)
    b_loads(k, 0, 18, 6)
    tr_addr(k, 2, RING, 7)
    for t in range(1, 4): k(f"v_xor_b32 v{2+t}, {32*t}, v2")
    k(f"s_add_u32 s{sNEED}, s{sL}, 1")
    k.wait([WOE], f"s{sNEED}", 7)
    def acc_init():
        k("s_waitcnt vmcnt(18)")
        for t in range(5):
            for h in range(2):
                a = ACC + 4 * t + 2 * h; r = RS + 2 * t + h
                k(f"v_lshlrev_b32 v{a}, 16, v{r}\nv_and_b32 v{a+1}, 0xffff0000, v{r}")
                k(f"v_fma_f32 v{a}, v{a}, v{RS+10}, -v{RS+11}\nv_fma_f32 v{a+1}, v{a+1}, v{RS+10}, -v{RS+11}")
        for i in range(4): k(f"v_mov_b32 v{ACC+20+i}, 0")
    late.append(gemm(k, "op", 4, acc_init, {9: lambda: k.wait(rng(WOL, 4), f"s{sNEED}", B0)}))
    k.ts(6)
    P = 8
    k(f"""v_bfe_u32 v2, v0, 8, 1
    v_lshrrev_b32 v3, 9, v0
    v_lshl_add_u32 v3, v2, 1, v3
    v_lshlrev_b32 v4, 4, v3
    v_add_u32 v4, {L_WRS}, v4
    ds_read_b128 v[20:23], v4
    ds_read_b128 v[24:27], v4 offset:64
    v_lshlrev_b32 v4, 3, v2
    v_add_u32 v5, {L_WRS}, v4
    ds_read_b64 v[28:29], v5 offset:128
    v_and_b32 v5, 0xf0, v0
    v_lshl_add_u32 v3, v3, 8, v5
    v_add_u32 v4, v4, v5
    s_mul_i32 s75, s{sJ}, 2304
    s_add_u32 s75, s75, s74
    s_add_u32 s75, s75, {G_XX}
    v_mov_b32 v30, 0
    v_mov_b32 v31, 0
    v_mov_b32 v32, 0
    v_mov_b32 v33, 0x3f803f80""")
    for t in range(4):
        for h in range(2): k(f"v_cvt_pk_bf16_f32 v{P+2*t+h}, v{ACC+4*t+2*h}, v{ACC+4*t+2*h+1}")
    for t in (0, 2):
        for h in range(2): k(f"v_permlane16_swap_b32 v{P+2*t+h}, v{P+2*t+2+h}")
    k.st2(late, f"""buffer_store_dwordx4 {v(P,4)}, v3, {WS}, s75 offen SC
    buffer_store_dwordx4 {v(P+4,4)}, v3, {WS}, s75 offen offset:1024 SC""")
    for r in range(4): k(f"v_permlane32_swap_b32 v{ACC+20+r}, v{ACC+r}")
    k("v_mov_b32 v16, 0\nv_mov_b32 v17, 0\ns_mov_b32 exec_hi, 0")
    for r in range(4): k(f"v_add_f32 v{ACC+16+r}, v{ACC+16+r}, v{ACC+r}")
    k(f"""v_cvt_pk_bf16_f32 v16, v{ACC+16}, v{ACC+17}
    v_cvt_pk_bf16_f32 v17, v{ACC+18}, v{ACC+19}""")
    k.st2(late, f"buffer_store_dwordx2 v[16:17], v4, {WS}, s75 offen offset:2048 SC")
    k(f"s_add_u32 s8, s{sL}, 2")
    k.post(OPD, "s8", 7, sT)
    k("s_waitcnt lgkmcnt(1)")
    for i in range(10):
        k(f"v_dot2c_f32_bf16 v30, v{P+i}, v33\nv_dot2c_f32_bf16 v31, v{P+i}, v{P+i}\nv_dot2c_f32_bf16 v32, v{P+i}, v{20+i}")
    redx(k, "v_add_f32", [30, 31, 32], [34, 35, 36])
    k(f"""s_lshl_b32 s75, s{sL}, 13
    s_add_u32 s75, s75, s{sGRP}
    s_lshl_b32 s76, s{sT}, 11
    s_add_u32 s75, s75, s76
    s_add_u32 s75, s75, {G_ST}
    s_lshl_b32 s76, s{sJ}, 8
    s_add_u32 s76, s76, s75
    s_mov_b64 exec, 0xffff""")
    k.st2(late, f"buffer_store_dwordx3 v[30:32], v0, {WS}, s76 offen SC")
    k(f"""s_mov_b64 exec, -1
    v_mov_b32 v2, {L_SW}
    ds_read_b32 v33, v2""")
    k.ts(7)
    k.label("A_st")
    k(f"""buffer_load_dwordx3 v[36:38], v0, {WS}, s75 offen sc1
    buffer_load_dwordx3 v[40:42], v0, {WS}, s75 offen offset:1024 sc1
    s_waitcnt vmcnt(0)""")
    k.umax(7, [36, 37, 38, 40, 41, 42])
    k("v_cmp_eq_u32 vcc, -1, v7")
    k.retry("A_st", 1)
    for i in range(3): k(f"v_add_f32 v{36+i}, v{36+i}, v{40+i}")
    redx(k, "v_add_f32", [36, 37, 38], [40, 41, 42])
    stats_fin(k, 36, 37)
    k(f"""v_add_f32 v40, {f32bits(EPS)}, v37
    v_rsq_f32 v40, v40
    s_waitcnt lgkmcnt(0)
    v_fma_f32 v41, -v36, v33, v38
    v_mul_f32 v41, v41, v40
    v_cvt_pk_bf16_f32 v41, v41, v41
    v_ashrrev_i32 v42, 31, v41
    v_or_b32 v42, 0x80000000, v42
    v_xor_b32 v41, v41, v42
    v_and_b32 v41, 0xffff0000, v41
    s_lshl_b32 s18, s{sG}, 6
    s_lshl_b32 s19, s{sT}, 4
    s_add_u32 s18, s18, s19
    s_sub_u32 s19, 0xffff, s18
    v_bfe_u32 v2, v0, 4, 4
    v_sub_u32 v42, s19, v2
    v_or_b32 v41, v41, v42
    v_mov_b32 v43, v41""")
    red16(k, "v_max_u32", 41)
    k(f"s_cmp_lg_u32 s{sJ}, 7"); k.br("scc1", "nokey")
    k(f"""s_lshl_b32 s19, s18, 3
    s_lshl_b32 s76, s{sL}, 14
    s_add_u32 s19, s19, s76
    s_add_u32 s19, s19, {W_KEY}
    s_mov_b64 exec, 1
    buffer_store_dword v41, off, {WS}, s19 sc1
    s_mov_b64 exec, -1""")
    k.label("nokey")
    k(f"""v_add_f32 v38, 1.0, v40
    v_mul_f32 v39, v36, v40
    v_cmp_eq_u32 s[8:9], v41, v43
    s_cmp_lg_u32 s{sL}, 0""")
    k.br("scc1", "A_cand")
    k(f"""v_mul_f32 v42, v38, v38
    v_mov_b32 v41, {f32bits(EPS)}
    v_fma_f32 v37, v42, v37, v41
    v_rsq_f32 v37, v37
    s_lshl_b32 s19, s{sT}, 8
    s_add_u32 s19, s19, {L_TOK}
    v_add_u32 v6, s19, v0
    s_mov_b64 exec, 0xffff
    v_mul_f32 v37, v37, v38
    ds_write_b128 v6, v[36:39]
    s_mov_b64 exec, -1""")
    k.label("A_cand")
    k(f"s_add_u32 s19, s{sL}, 2")
    k.post(TOKF, "s19", 7, sT)
    k.ts(8)
    k(f"""v_lshrrev_b32 v3, 8, v3
    v_lshlrev_b32 v3, 4, v3
    v_and_b32 v4, 8, v4
    s_mul_i32 s75, s{sL}, 9216
    s_mul_i32 s76, s{sT}, 2304
    s_add_u32 s75, s75, s76
    s_add_u32 s75, s75, s{sGRP}
    s_add_u32 s75, s75, s{sJ144}
    s_add_u32 s75, s75, {G_CD}""")
    for i in range(10):
        k(f"""v_lshlrev_b32 v20, 16, v{P+i}
        v_and_b32 v21, 0xffff0000, v{P+i}
        v_fma_f32 v22, v20, v40, -v39
        v_fma_f32 v23, v21, v40, -v39
        v_cvt_pk_bf16_f32 v{44+i}, v22, v23
        v_add_f32 v20, v20, v22
        v_add_f32 v21, v21, v23
        v_cvt_pk_bf16_f32 v{56+i}, v20, v21""")
    k(f"""s_mov_b64 exec, s[8:9]
    buffer_store_dwordx4 v[44:47], v3, {WS}, s75 offen sc1
    buffer_store_dwordx4 v[48:51], v3, {WS}, s75 offen offset:64 sc1
    buffer_store_dwordx4 {v(P,4)}, v3, {WS}, s75 offen offset:1152 sc1
    buffer_store_dwordx4 {v(P+4,4)}, v3, {WS}, s75 offen offset:1216 sc1
    s_mov_b32 exec_hi, 0
    buffer_store_dwordx2 v[52:53], v4, {WS}, s75 offen offset:128 sc1
    buffer_store_dwordx2 v[16:17], v4, {WS}, s75 offen offset:1280 sc1
    s_mov_b64 exec, -1
    s_cmp_lg_u32 s{sL}, 0""")
    k.br("scc1", "A_tail")
    k(f"s_mov_b32 s{sL}, 1")
    k.tscopy()
    k.jmp("A_att")
    k.label("A_tail")
    def rows():
        k(f"""buffer_store_dwordx4 v[56:59], v3, {ROUT}, s{sJ144} offen sc1
        buffer_store_dwordx4 v[60:63], v3, {ROUT}, s{sJ144} offen offset:64 sc1
        s_mov_b32 exec_hi, 0
        buffer_store_dwordx2 v[64:65], v4, {ROUT}, s{sJ144} offen offset:128 sc1""".replace(" sc1", " sc1" if "outsc" in OPT else ""))
    k(f"""v_add_u32 v5, s18, v2
    v_mul_u32_u24 v5, {ROWB}, v5
    v_add_u32 v3, v3, v5
    v_add_u32 v4, v4, v5
    s_not_b64 exec, s[8:9]""")
    rows()
    k("s_mov_b64 exec, -1")
    k.wait([SEL0 + 1], 1, 7, sleep=1)
    k(f"v_readlane_b32 s73, v7, {SEL0+1}\nv_cmp_ne_u32 vcc, s73, v43\ns_and_b64 exec, vcc, s[8:9]")
    k.br("scc0", "end")
    rows()
    k.jmp("end")
    return k, late

def role_B(k, late):
    k.label("B_start")
    k("s_setprio 2")
    k(f"""s_lshl_b32 s74, s{sG}, 6
    s_lshl_b32 s75, s{sT}, 4
    s_add_u32 s74, s74, s75
    s_mul_i32 s74, s74, {ROWB}
    v_lshrrev_b32 v2, 6, v0
    v_mul_u32_u24 v2, {ROWB}, v2
    v_and_b32 v3, 0x30, v0
    v_add_u32 v2, v2, v3""")
    for st in range(18): k(f"buffer_load_dwordx4 {v(B0+4*st,4)}, v2, {RX}, s74 offen offset:{64*st}")
    k(f"""s_lshl_b32 s74, s{sG}, 3
    s_add_u32 s74, s74, s{sJ}
    s_lshl_b32 s74, s74, 4
    s_add_u32 s74, s74, s{sT}
    s_lshl_b32 s74, s74, 3
    s_add_u32 s{sROT}, s74, {W_FL}
    v_mov_b32 v80, 0
    v_mov_b32 v81, 0
    v_mov_b32 v82, 0
    v_mov_b32 v83, 0
    v_mov_b32 v84, 0x3f803f80
    s_mov_b64 exec, 1
    buffer_load_dword v85, off, {WS}, s{sROT} offset:4 sc1
    s_mov_b64 exec, -1
    s_mul_i32 s74, s{sT}, 9216
    s_add_u32 s74, s74, {RING}
    v_lshrrev_b32 v3, 4, v0
    v_and_b32 v3, 0x30, v3
    v_xor_b32 v2, v0, v3
    v_add_u32 v2, s74, v2
    v_lshrrev_b32 v4, 2, v0
    v_and_b32 v4, 0x30, v4
    v_xor_b32 v3, v3, v4
    v_and_b32 v4, 0xf0, v0
    v_lshl_add_u32 v3, v4, 2, v3
    v_add_u32 v3, s74, v3""")
    k.tss(10)
    for st in range(18):
        k(f"s_waitcnt vmcnt({18 - st})")
        if st in (0, 8, 17): k.tss({0: 12, 8: 13, 17: 14}[st])
        k(f"ds_write_b128 v2, {v(B0+4*st,4)} offset:{1024*(st%9)}")
        for i in range(4):
            k(f"v_dot2c_f32_bf16 v{80+2*(i&1)}, v{B0+4*st+i}, v84\nv_dot2c_f32_bf16 v{81+2*(i&1)}, v{B0+4*st+i}, v{B0+4*st+i}")
        k(f"ds_read_b128 {v(B0+4*st,4)}, v3 offset:{1024*(st%9)}")
        if st % 6 == 5 and st < 17: k("s_waitcnt lgkmcnt(2)")
    k.ts(6)
    k("v_add_f32 v80, v80, v82\nv_add_f32 v81, v81, v83")
    for ctl in ("quad_perm:[1,0,3,2]", "quad_perm:[2,3,0,1]"):
        for r in (80, 81): k(f"v_add_f32_dpp v{r}, v{r}, v{r} {ctl} {DPP_ALL}")
    stats_fin(k, 80, 81)
    k(f"""v_add_f32 v81, {f32bits(EPS)}, v81
    v_rsq_f32 v81, v81
    v_mov_b32 v82, 1.0
    v_mov_b32 v83, 0
    s_lshl_b32 s75, s{sT}, 8
    s_add_u32 s75, s75, {L_TOK}
    v_lshrrev_b32 v2, 2, v0
    v_add_u32 v2, s75, v2
    s_mov_b32 exec_lo, 0x11111111
    s_mov_b32 exec_hi, 0x11111111
    ds_write_b128 v2, v[80:83]
    s_mov_b64 exec, -1
    s_waitcnt vmcnt(0)
    v_readfirstlane_b32 s{sLIVE}, v85
    s_getreg_b32 s74, hwreg(HW_REG_XCC_ID, 0, 3)
    s_add_u32 s{sLIVE}, s{sLIVE}, {FLC}
    s_add_u32 s{sLIVE}, s{sLIVE}, s74""")
    k.post(TOKF, 1, 7, sT)
    k.wait([W5A, W5B_], 1, 7)
    k(f"v_lshrrev_b32 v2, 1, v0\nv_add_u32 v2, {L_W5A}, v2")
    for u in range(9):
        k(TR(RES + 4 * u, 2, 1024 * u))
        if u == 4: k("s_waitcnt lgkmcnt(0)")
    k.label("B_gemm")
    k(f"v_lshrrev_b32 v2, 1, v0\nv_add_u32 v2, {L_W5B}, v2\ns_waitcnt lgkmcnt(0)")
    for u in range(9):
        k(TR(SL + 4 * u, 2, 1024 * u))
        if u == 6: k("s_waitcnt lgkmcnt(4)")
    k(f"""s_lshr_b32 s11, s{sG}, 1
    s_mul_i32 s11, s11, {QUAD}
    s_mul_i32 s14, s{sL}, {KVS}
    s_add_u32 s11, s11, s14
    s_and_b32 s14, s{sG}, 1
    s_lshl_b32 s14, s14, 2
    s_add_u32 s14, s14, s{sT}
    s_mul_i32 s15, s{sT}, 2560
    s_add_u32 s15, s15, {L_QST}
    v_lshrrev_b32 v3, 8, v0
    v_and_b32 v4, 0xf0, v0
    v_mul_u32_u24 v6, 10, v4
    v_lshl_add_u32 v6, v3, 3, v6
    v_add_u32 v6, s15, v6
    v_bfe_u32 v5, v0, 6, 3
    v_mul_u32_u24 v5, 160, v5
    v_bfe_u32 v2, v0, 4, 2
    v_lshl_add_u32 v5, v2, 3, v5
    v_add_u32 v5, s15, v5
    v_and_b32 v3, 1, v3
    s_cmp_eq_u32 s{sJ}, 4""")
    k.br("scc1", "kva_kb")
    k(f"s_cmp_ge_u32 s{sJ}, 2"); k.br("scc1", "kva_v")
    k(f"""s_lshr_b32 s15, s14, 1
    s_lshl_b32 s15, s15, 10
    s_add_u32 s11, s11, s15
    s_lshl_b32 s15, s{sJ}, 9
    s_add_u32 s11, s11, s15
    s_and_b32 s15, s14, 1
    s_lshl_b32 s15, s15, 8
    s_add_u32 s11, s11, s15
    v_lshl_add_u32 v4, v3, 3, v4""")
    k.jmp("kva_done")
    k.label("kva_kb")
    k(f"""s_lshl_b32 s15, s14, 6
    s_add_u32 s11, s11, s15
    s_add_u32 s11, s11, 8960
    v_lshrrev_b32 v4, 2, v4""")
    k.jmp("kva_done")
    k.label("kva_v")
    k(f"""s_mul_i32 s15, s14, 608
    s_add_u32 s11, s11, s15
    s_add_u32 s11, s11, 4096
    v_mul_u32_u24 v3, 304, v3
    s_cmp_eq_u32 s{sJ}, 5""")
    k.br("scc1", "kva_v5")
    k(f"""v_lshl_add_u32 v3, v2, 4, v3
    v_bfe_u32 v2, v0, 6, 1
    v_lshl_add_u32 v4, v2, 7, v3
    s_and_b32 s15, s{sJ}, 1
    s_lshl_b32 s15, s15, 6
    s_add_u32 s11, s11, s15
    s_mov_b32 s12, 0xff00ff00
    s_mov_b32 s13, 0""")
    k.jmp("kva_done")
    k.label("kva_v5")
    k(f"""v_add3_u32 v4, v3, v4, 32
    s_mov_b64 exec, 0x20002000
    v_add_u32 v4, 48, v4
    s_mov_b64 exec, -1
    s_mov_b32 s12, 0xe000e000
    s_mov_b32 s13, 0x20002000""")
    k.label("kva_done")
    k(f"""s_lshl_b32 s16, {1 << (TOKF-32)}, s{sT}
    s_or_b32 s16, s16, {hex(sum(1 << (w - 32) for w in [CSF+4] + rng(OPD,4)))}
    s_add_u32 s17, s{sL}, 1
    v_lshrrev_b32 v2, 8, v0
    v_lshlrev_b32 v2, 4, v2
    v_add_u32 v2, {L_CS}, v2
    s_lshl_b32 s15, s{sT}, 8
    s_add_u32 s15, s15, {L_TOK}
    v_and_b32 v3, 0xf0, v0
    v_add_u32 v3, s15, v3
    s_cmp_eq_u32 s{sL}, 0""")
    k.br("scc1", "B_go")
    k(f"s_add_u32 s74, s{sTIL}, {G_XX}\ns_lshl_b32 s18, {1 << (OPD-32)}, s{sT}")
    b_bases(k, 0)
    k.wait(None, 2, 7, smask=18, hi=True)
    b_loads(k, 0)
    k.label("B_go")
    k("s_waitcnt lgkmcnt(0)")
    k.ts(7)
    stubs = []
    for st in range(18):
        if st % 3 == 0:
            k(f"s_waitcnt vmcnt({15 - st})")
            k.umax(7, rng(B0 + 4 * st, 12))
            check_stub(k, st // 3, 0, stubs)
        k(MF16(ACC + 16 + 4 * (st & 1), RES + 4 * st if st < 9 else SL + 4 * (st - 9), B0 + 4 * st, "0" if st < 2 else None))
    late.append(emit_stubs(k, stubs))
    k.wait(None, "s17", 7, smask=16, hi=True)
    E = ACC + 8
    k(f"""ds_read_b64 {v(E,2)}, v3
    ds_read_b128 {v(E+4,4)}, v2 offset:256
    s_mov_b32 vcc_lo, -1
    s_mov_b32 vcc_hi, 0""")
    for r in range(4): k(f"v_add_f32 v{ACC+16+r}, v{ACC+16+r}, v{ACC+20+r}")
    k(f"""s_waitcnt lgkmcnt(1)
    v_mov_b32 v{ACC+20}, v{E}
    v_mul_f32 v{ACC+21}, {f32bits(QSCALE)}, v{E+1}
    v_cndmask_b32 v{E+1}, v{E+1}, v{ACC+21}, vcc
    s_waitcnt lgkmcnt(0)""")
    for r in range(4): k(f"v_fma_f32 v{ACC+16+r}, -v{E}, v{E+4+r}, v{ACC+16+r}")
    for r in range(4): k(f"v_mul_f32 v{ACC+16+r}, v{ACC+16+r}, v{E+1}")
    k(f"""v_cvt_pk_bf16_f32 v{ACC+22}, v{ACC+16}, v{ACC+17}
    v_cvt_pk_bf16_f32 v{ACC+23}, v{ACC+18}, v{ACC+19}
    ds_write_b64 v6, {v(ACC+22,2)} offset:128
    s_cmp_ge_u32 s{sJ}, 6""")
    k.br("scc1", "kv_done")
    k(f"s_cmp_eq_u32 s{sJ}, 4"); k.br("scc1", "kv_kb")
    k(f"s_cmp_ge_u32 s{sJ}, 2"); k.br("scc1", "kv_v")
    k(f"s_mov_b32 exec_lo, 0\nbuffer_store_dwordx2 {v(ACC+22,2)}, v4, {WS}, s11 offen sc1")
    k.jmp("kv_done")
    k.label("kv_kb")
    k(f"s_mov_b32 exec_lo, 0\ns_mov_b32 exec_hi, 0xffff0000\nbuffer_store_dword v{ACC+23}, v4, {WS}, s11 offen sc1")
    k.jmp("kv_done")
    k.label("kv_v")
    k(f"""ds_read_b64_tr_b16 {v(ACC+16,2)}, v5 offset:128
    ds_read_b64_tr_b16 {v(ACC+18,2)}, v5 offset:{128+1280}
    s_mov_b32 exec_hi, 0
    s_mov_b32 exec_lo, s13
    s_waitcnt lgkmcnt(0)""")
    for r in range(4): k(f"v_mov_b32 v{ACC+16+r}, 0x3f803f80")
    k(f"s_mov_b32 exec_lo, s12\nbuffer_store_dwordx4 {v(ACC+16,4)}, v4, {WS}, s11 offen sc1")
    k.label("kv_done")
    k.post(KVP, "s17", 7, sT)
    k.ts(8)
    def flag():
        k(f"""s_mov_b64 exec, 1
        v_mov_b32 v7, s{sLIVE}
        s_waitcnt vmcnt(0)
        buffer_store_dword v7, off, {WS}, s{sROT} sc1
        s_mov_b64 exec, -1""")
    tr_addr(k, 2, 0, 7)
    for t in range(1, 4): k(f"v_xor_b32 v{2+t}, {32*t}, v2")
    def h0():
        k(f"s_cmp_lg_u32 s{sL}, 0"); k.br("scc1", "q0")
        flag()
        k.ts(2)
        k.wait(rng(WF, 4), 1, 7)
        k.label("q0")
    def h6():
        k(f"s_cmp_lg_u32 s{sL}, 0"); k.br("scc1", "q6")
        k.wait(rng(WF, 4), 2, 7)
        k.label("q6")
    def h9():
        k(f"s_cmp_eq_u32 s{sL}, 0"); k.br("scc1", "q9")
        flag()
        if Kern.TS: k("s_memrealtime s[100:101]\ns_waitcnt lgkmcnt(0)\ns_mov_b32 s82, s100")
        k.label("q9")
    def h12():
        k(f"s_cmp_lg_u32 s{sL}, 0"); k.br("scc1", "q12")
        k.wait(rng(WF, 4), 3, 7)
        k.label("q12")
    gemm(k, "q", hooks={0: h0, 6: h6, 9: h9, 12: h12})
    k(f"""v_lshrrev_b32 v2, 8, v0
    v_lshlrev_b32 v2, 4, v2
    v_add_u32 v2, {L_CS}, v2
    s_cmp_lg_u32 s{sL}, 0""")
    k.br("scc1", "q18")
    k.wait(rng(CSF, 4), 1, 7)
    k.label("q18")
    for t in range(4): k(f"ds_read_b128 {v(8+4*t,4)}, v2 offset:{64*t}")
    for t in range(4):
        k(f"s_waitcnt lgkmcnt(3)")
        for r in range(4): k(f"v_fma_f32 v{ACC+4*t+r}, -v{ACC+20}, v{8+4*t+r}, v{ACC+4*t+r}")
        for r in range(4): k(f"v_mul_f32 v{ACC+4*t+r}, v{ACC+4*t+r}, v{ACC+21}")
        k(f"v_cvt_pk_bf16_f32 v{32+2*t}, v{ACC+4*t}, v{ACC+4*t+1}\nv_cvt_pk_bf16_f32 v{33+2*t}, v{ACC+4*t+2}, v{ACC+4*t+3}")
        k(f"ds_write_b64 v6, {v(32+2*t,2)} offset:{32*t}")
    k.post(QRDY, "s17", 7, sT)
    k.ts(1)
    k.jmp("att")
    k.label("B_post")
    wo_setup(k, 2, 3, 4, 5)
    k(f"""s_and_b32 s75, s{sT}, 1
    s_lshl_b32 s75, s75, 6
    v_xor_b32 v2, s75, v2
    v_xor_b32 v3, s75, v3
    v_xor_b32 v4, s75, v4
    s_mul_i32 s75, s{sT}, {72*ROWB}
    s_add_u32 s75, s75, s{sJ144}
    s_add_u32 s75, s75, {4*72*ROWB}
    s_mul_i32 s76, s{sT}, 9216
    s_add_u32 s76, s76, {RING + 4*9216}""")
    k.wait(rng(PROG, 8), f"s{sPRG}", 5)
    wo_dma(k, 2, 3, 4, 75, 76)
    k(f"s_add_u32 s77, s{sL}, 1\ns_waitcnt vmcnt(0)\ns_setprio 0")
    k.post(WOL, "s77", 5, sT)
    k(f"s_cmp_lg_u32 s{sL}, 0"); k.br("scc1", "end")
    k.tscopy()
    k.ts(6)
    k(f"""s_mov_b32 s{sL}, 1
    s_mov_b32 s{sLIVE}, {FLC}
    s_add_u32 s{sROT}, s{sROT}, {FLS}
""")
    k.jmp("B_gemm")

def blk_row(k, dst, t):
    k(f"""v_bfe_u32 v{dst}, v0, 7, 2
    v_lshlrev_b32 v{dst}, 3, v{dst}
    v_lshrrev_b32 v{t}, 9, v0
    v_lshl_add_u32 v{dst}, v{t}, 2, v{dst}
    v_bfe_u32 v{t}, v0, 5, 2
    v_add_u32 v{dst}, v{dst}, v{t}""")

def colsum_out(k, acc, tile_sreg):
    k(f"""v_lshrrev_b32 v4, 4, v0
    s_lshl_b32 s74, s{tile_sreg}, 6
    s_add_u32 s74, s74, {L_CS}
    v_add_u32 v4, s74, v4
    s_mov_b32 exec_lo, 0x00010001
    s_mov_b32 exec_hi, 0x00010001
    ds_write_b128 v4, {v(acc,4)}
    s_mov_b64 exec, -1""")
    k.post(CSF, BIG, 5, tile_sreg)

def slot_dma(k, sso, sm0):
    for q in range(5):
        k(f"s_add_u32 m0, s{sm0}, {4096*q}\ns_add_u32 s79, s{sso}, {4096*q}")
        for i in range(4 if q < 4 else 3):
            if q == 4 and i == 2: k("s_mov_b32 exec_hi, 0")
            k(f"buffer_load_dwordx4 v0, {WS}, s79 offen offset:{1024*i} sc1 lds")
    k("s_mov_b32 exec_hi, -1")

def role_H(k, late):
    k.label("H_start")
    k("s_setprio 3")
    k(f"s_cmp_eq_u32 s{sT}, 2"); k.br("scc1", "H2s")
    k(f"s_cmp_eq_u32 s{sT}, 3"); k.br("scc1", "H3s")
    if "g0" in OPT: k("s_setprio 0")
    if "g1" in OPT: k("s_setprio 1")
    if "gs" in OPT: k("s_sleep 40")
    k(f"""s_add_u32 s74, s{P_WQ}, s{sJ144}
    s_addc_u32 s75, s{P_WQ+1}, 0
    s_lshr_b32 s78, 0x2c, s{sJ}
    s_bitcmp1_b32 s78, 0
    s_cselect_b32 s76, s{P_WV}, s{P_WK}
    s_cselect_b32 s77, s{P_WV+1}, s{P_WK+1}
    s_and_b32 s78, s{sJ}, 1
    s_lshl_b32 s78, s78, 4
    s_cmp_ge_u32 s{sJ}, 4
    s_cselect_b32 s78, 20, s78
    s_add_u32 s76, s76, s78
    s_addc_u32 s77, s77, 0
    s_mul_i32 s78, s{sT}, 288""")
    blk_row(k, 2, 3)
    k(f"""v_add_u32 v2, s78, v2
    v_and_b32 v3, 16, v0
    v_cmp_eq_u32 vcc, 0, v3
    v_mov_b32 v4, s74
    v_mov_b32 v5, s75
    v_mov_b32 v6, s76
    v_mov_b32 v7, s77
    v_cndmask_b32 v4, v6, v4, vcc
    v_cndmask_b32 v5, v7, v5, vcc
    v_mov_b32 v6, {ROWB}
    v_cndmask_b32 v6, 36, v6, vcc
    v_mul_u32_u24 v2, v2, v6
    v_mov_b32 v7, 0x80
    v_cndmask_b32 v7, 0, v7, vcc
    v_add_u32 v2, v2, v7
    v_lshlrev_b32 v6, 5, v6
    v_add_co_u32 v4, vcc, v4, v2
    v_addc_co_u32 v5, vcc, 0, v5, vcc
    s_cmp_eq_u32 s{sT}, 0
    s_cselect_b32 s74, {L_W5A}, {L_W5B}""".replace(f"s_cselect_b32 s74, {L_W5A}, {L_W5B}", f"s_mov_b32 s74, {L_W5B}\ns_cselect_b32 s74, {L_W5A}, s74"))
    for u in range(9):
        k(f"s_add_u32 m0, s74, {1024*u}\nglobal_load_lds_dwordx4 v[4:5], off")
        if u < 8: k("v_add_co_u32 v4, vcc, v4, v6\nv_addc_co_u32 v5, vcc, 0, v5, vcc")
    k.tss(10)
    k("s_waitcnt vmcnt(0)")
    k.tss(12)
    k("s_setprio 3")
    k.post(W5A, 3, 5, sT)
    k(f"s_cmp_eq_u32 s{sT}, 0"); k.br("scc1", "H_cs")
    k.wait([W5A], 3, 5)
    k(f"v_lshrrev_b32 v2, 1, v0\nv_add_u32 v3, {L_W5B}, v2\nv_add_u32 v2, {L_W5A}, v2")
    for i in range(4): k(f"v_mov_b32 v{8+i}, 0x3f803f80")
    for u in range(18):
        k(TR(HW + 4 * u, 2 if u < 9 else 3, 1024 * (u % 9)))
        if u % 6 == 5:
            k("s_waitcnt lgkmcnt(0)")
            for w in range(u - 5, u + 1): k(MF16(HCS, HW + 4 * w, 8, "0" if w == 0 else None))
    k("s_mov_b32 s75, 4")
    colsum_out(k, HCS, 75)
    k.jmp("H_cs")
    k.label("H2s")
    k(f"""s_lshr_b32 s74, s2, 3
    s_mul_i32 s74, s74, {162*128}
    v_lshlrev_b32 v2, 3, v0
    s_mov_b32 exec_hi, 0x3fffff""")
    for i in range(3): k(f"buffer_load_dword v{4+i}, v2, {RWQ}, s74 offen\ns_add_u32 s74, s74, {54*128}")
    k(f"""s_lshl_b32 s74, s{sG}, 3
    s_add_u32 s74, s74, s{sJ}
    s_mul_i32 s74, s74, {72*128}
    s_mov_b32 exec_hi, 0xf
    buffer_load_dword v7, v2, {RX}, s74 offen
    s_add_u32 s74, s74, {36*128}
    buffer_load_dword v8, v2, {RX}, s74 offen
    s_lshr_b32 s74, s2, 3
    s_mul_i32 s74, s74, {6*128}
    v_add_u32 v2, s74, v2
    v_min_u32 v2, {D*36-4}, v2
    s_mov_b64 exec, 0x3f
    global_load_dword v9, v2, s[{P_WK}:{P_WK+1}]
    global_load_dword v10, v2, s[{P_WV}:{P_WV+1}]
    s_mov_b64 exec, -1
    s_waitcnt vmcnt(0)""")
    k.jmp("H_cs")
    k.label("H2w")
    k(f"""v_bfe_u32 v2, v0, 7, 2
    v_bfe_u32 v3, v0, 4, 1
    v_lshl_add_u32 v2, v3, 2, v2
    v_lshrrev_b32 v3, 9, v0
    v_bfe_u32 v4, v0, 5, 2
    v_lshl_add_u32 v3, v3, 2, v4
    v_lshrrev_b32 v4, 1, v3
    v_mul_u32_u24 v4, 18, v4
    v_and_b32 v5, 1, v3
    v_add3_u32 v4, v4, v5, 16
    s_add_u32 s74, s{sJ144}, 128""")
    for u in range(9):
        k(f"""v_add_u32 v5, {8*u}, v2
        v_mul_u32_u24 v6, 57, v5
        v_lshrrev_b32 v6, 9, v6
        v_mul_u32_u24 v7, 9, v6
        v_sub_u32 v5, v5, v7
        v_lshrrev_b32 v7, 1, v5
        v_mul_u32_u24 v7, 18, v7
        v_cmp_eq_u32 vcc, 8, v5
        v_and_b32 v5, 1, v5
        v_lshl_add_u32 v5, v5, 3, v3
        v_add_u32 v5, v5, v7
        v_cndmask_b32 v5, v5, v4, vcc
        v_mul_u32_u24 v6, 72, v6
        v_add_u32 v5, v5, v6
        v_mul_u32_u24 v{8+u}, {ROWB}, v5
        s_mov_b32 m0, {L_WO5 + 1024*u}
        buffer_load_dwordx4 v{8+u}, {RWO}, s74 offen lds""")
    k("s_waitcnt vmcnt(0)")
    k.post(WO5, 3, 5)
    k.jmp("H_work")
    k.label("H3s")
    k.label("H_cs")
    tr_addr(k, 2, 0, 5)
    k(f"s_lshl_b32 s74, s{sT}, 5\nv_xor_b32 v2, s74, v2")
    for i in range(4): k(f"v_mov_b32 v{8+i}, 0x3f803f80")
    for st in range(3):
        k.wait(rng(WF, 4), st + 1, 5)
        for i in range(6): k(TR(16 + 4 * i, 2, 4096 * i))
        k(f"v_add_u32 v2, {6*4096}, v2")
        for i in range(6):
            k(f"s_waitcnt lgkmcnt({10 - 2*i})")
            k(MF16(12, 16 + 4 * i, 8, "0" if st + i == 0 else None))
    colsum_out(k, 12, sT)
    k.ts(1)
    k(f"s_cmp_eq_u32 s{sT}, 2"); k.br("scc1", "H2w")
    k(f"s_cmp_lg_u32 s{sT}, 0"); k.br("scc1", "H_work")
    wo_setup(k, 2, 3, 4, 5)
    k("v_xor_b32 v6, 64, v4\nv_lshrrev_b32 v5, 5, v0\nv_and_b32 v7, 16, v0\nv_lshl_add_u32 v5, v5, 7, v7")
    k(f"s_lshr_b32 s{sROT}, s{sG}, 2")
    k.label("H0_layer")
    k(f"""s_lshl_b32 s{sPRG}, s{sL}, 4
    s_lshl_b32 s{sNEED}, s{sL}, 4
    s_mul_i32 s73, s{sL}, {FLS}
    s_add_u32 s73, s73, {W_FL}
    s_add_u32 s74, s{sROT}, 1
    s_and_b32 s74, s74, 7
    s_lshl_b32 s75, s74, 12
    s_add_u32 s75, s75, s73
    s_lshl_b32 s74, s{sROT}, 12
    s_add_u32 s74, s74, s73
    s_add_u32 s18, s{sL}, 1""")
    def src(i):
        k(f"""s_add_u32 s76, s{sROT}, {i}
        s_and_b32 s76, s76, 7
        s_mul_i32 s76, s76, {SUPER}
        s_mul_i32 s77, s{sL}, {KVS}
        s_add_u32 s76, s76, s77""")
    src(0)
    k(f"s_mov_b32 s77, {RING}")
    k.wait(rng(KVP, 4), "s18", 7)
    k.label("H0_f0")
    poll_flags(k, 8, 74)
    k("s_waitcnt vmcnt(0)")
    check_flags(k, 8, 1, 7)
    k.retry("H0_f0", 1)
    k.ts(5)
    slot_dma(k, 76, 77)
    k(f"s_cmp_lg_u32 s{sL}, 0"); k.br("scc1", "H0_nx")
    k(f"""s_getreg_b32 s76, hwreg(HW_REG_XCC_ID, 0, 3)
    v_cmp_ne_u32 vcc, s76, v8
    v_cmp_ne_u32 s[76:77], s76, v10
    s_or_b64 vcc, vcc, s[76:77]
    s_lshl_b32 s76, s{sG}, 4
    s_lshr_b64 vcc, vcc, s76
    s_and_b32 s76, vcc_lo, 0xffff
    s_cselect_b32 s76, 0, 1""")
    k.post(SAMEX, "s76", 7)
    k.label("H0_nx")
    src(1)
    k(f"s_mov_b32 s77, {RING + SUPER}\ns_add_u32 s{sNEED}, s{sNEED}, 1")
    k.label("H0_f1")
    poll_flags(k, 8, 75)
    k("s_waitcnt vmcnt(1)")
    k.post(FULL, f"s{sNEED}", 7)
    k("s_waitcnt vmcnt(0)")
    check_flags(k, 8, 1, 7)
    k.retry("H0_f1", 1)
    slot_dma(k, 76, 77)
    k(f"s_add_u32 s{sNEED}, s{sNEED}, 1")
    k.label("H0_fa")
    poll_flags(k, 8, 73, 8)
    k("s_waitcnt vmcnt(8)")
    k.post(FULL, f"s{sNEED}", 7)
    k("s_waitcnt vmcnt(0)")
    check_flags(k, 8, 8, 7)
    k.retry("H0_fa", 2)
    k.ts(2)
    k(f"s_add_u32 s{sPRG}, s{sPRG}, 1")
    k.wait(rng(PROG, 8), f"s{sPRG}", 7, sleep=1)
    for i in (2, 3):
        src(i)
        k(f"s_mov_b32 s77, {RING + i*SUPER}")
        slot_dma(k, 76, 77)
    for i in (2, 3):
        k(f"s_add_u32 s{sNEED}, s{sNEED}, 1\ns_waitcnt vmcnt({19 if i == 2 else 0})")
        k.post(FULL, f"s{sNEED}", 7)
    k(f"s_cmp_eq_u32 s{sL}, 0"); k.br("scc1", "H0_ns")
    k(f"""s_lshl_b32 s74, s{sG}, 3
    s_add_u32 s74, s74, s{sJ}
    s_lshl_b32 s74, s74, 7
    s_add_u32 s74, s74, {W_FL}
    v_lshrrev_b32 v7, 1, v0
    s_mov_b64 exec, 31
    buffer_load_dword v8, v7, {WS}, s74 offen sc1
    s_waitcnt vmcnt(0)
    buffer_store_dword v8, v7, {WS}, s74 offen offset:4 sc1
    s_mov_b64 exec, -1""")
    k.label("H0_ns")
    k("s_mov_b32 s18, 4")
    k.label("H0_ring")
    k(f"s_add_u32 s{sPRG}, s{sPRG}, 1")
    k.wait(rng(PROG, 8), f"s{sPRG}", 7, sleep=2)
    k(f"s_cmp_lg_u32 s{sNEED}, 23"); k.br("scc1", "H0_nopf")
    k(f"s_mov_b32 s74, {W_PF}\nv_lshrrev_b32 v9, 2, v0\nv_min_u32 v9, 20, v9")
    k.label("H0_pf")
    k(f"buffer_load_dword v8, v9, {WS}, s74 offen sc1\ns_waitcnt vmcnt(0)\nv_cmp_eq_u32 vcc, -1, v8")
    k.retry("H0_pf", 2)
    k.ts(3)
    k.label("H0_nopf")
    src("s18")
    k(f"s_and_b32 s77, s18, 3\ns_mul_i32 s77, s77, {SUPER}\ns_add_u32 s77, s77, {RING}")
    slot_dma(k, 76, 77)
    k(f"s_cmp_eq_u32 s18, 7\ns_addc_u32 s{sNEED}, s{sNEED}, 1\ns_waitcnt vmcnt(0)")
    k.post(FULL, f"s{sNEED}", 7)
    k("s_add_u32 s18, s18, 1\ns_cmp_lt_u32 s18, 8"); k.br("scc1", "H0_ring")
    k(f"s_cmp_lg_u32 s{sL}, 0"); k.br("scc1", "H0_nr")
    k("v_lshlrev_b32 v16, 3, v0")
    k.label("H0_rf")
    for i in range(4): k(f"s_mov_b32 s74, {W_FL + 8192*i}\nbuffer_load_dwordx2 {v(8+2*i,2)}, v16, {WS}, s74 offen offset:32 sc1")
    k("s_waitcnt vmcnt(0)")
    check_flags(k, 8, 2, 7)
    k.retry("H0_rf", 4)
    k.post(RALL, BIG, 7)
    k.label("H0_nr")
    for h in range(2):
        k(f"s_add_u32 s{sPRG}, s{sPRG}, 1")
        k.wait(rng(PROG, 8), f"s{sPRG}", 7, sleep=2)
        for jj in (2 * h, 2 * h + 1):
            k(f"s_add_u32 s75, s{sJ144}, {jj*72*ROWB}\ns_mov_b32 s76, {RING + jj*9216}")
            if jj & 1: wo_dma(k, 3, 2, 6, 75, 76)
            else: wo_dma(k, 2, 3, 4, 75, 76)
    k(f"s_add_u32 s74, s{sL}, 1\ns_waitcnt vmcnt(0)")
    k.post(WOE, "s74", 7)
    k(f"s_add_u32 s74, s{sL}, 2")
    k.wait(rng(TOKF, 4), "s74", 7, sleep=1)
    if "keylate" in OPT: k.wait(rng(QRDY, 4), 2, 7, sleep=1)
    k(f"s_lshl_b32 s74, s{sL}, 14\ns_add_u32 s74, s74, {W_KEY}\ns_add_u32 s75, s74, 8192\nv_lshlrev_b32 v7, 3, v0")
    k.label("H0_key")
    k(f"buffer_load_dword v8, v7, {WS}, s74 offen sc1\nbuffer_load_dword v9, v7, {WS}, s75 offen sc1\ns_waitcnt vmcnt(0)\nv_min_u32 v10, v8, v9\nv_cmp_eq_u32 vcc, 0, v10")
    k.retry("H0_key", 1)
    k("v_max_u32 v8, v8, v9")
    red16(k, "v_max_u32", 8)
    redx(k, "v_max_u32", [8], [9])
    k(f"v_max_u32 v8, 2, v8\ns_add_u32 s79, s{sL}, {SEL0}\ns_lshl_b64 exec, 1, s79\nds_write_b32 v1, v8\ns_mov_b64 exec, -1")
    k.ts(4)
    k(f"s_cmp_lg_u32 s{sL}, 0"); k.br("scc1", "end")
    k.tscopy()
    k(f"""v_readfirstlane_b32 s74, v8
    s_mov_b32 s{sL}, 1
    s_not_b32 s74, s74
    s_bfe_u32 s{sROT}, s74, 0x30008
    s_add_u32 s{sROT}, s{sROT}, 1
    s_and_b32 s{sROT}, s{sROT}, 7""")
    k.jmp("H0_layer")

def role_Hw(k, late):
    sHW, sU = 70, 71
    k.label("H_work")
    k(f"s_sub_u32 s{sHW}, s{sT}, 1")
    k.wait(rng(PROG, 8), 2, 5, sleep=8)
    for i in range(4): k(f"v_mov_b32 v{8+i}, -1")
    k(f"""v_readlane_b32 s18, v5, {SAMEX}
    s_lshl_b32 s9, s{sG}, 3
    s_add_u32 s9, s9, s{sJ}
    s_lshl_b32 s75, s9, 12
    s_add_u32 s75, s75, {W_GLB - 41*1024}
    s_lshl_b32 s9, s9, 7
    s_add_u32 s9, s9, {W_FL}
    buffer_load_dword v28, off, {WS}, s9 offset:36 sc1
    s_mul_i32 s74, s{sJ}, {41*1024}
    s_add_u32 s74, s74, s{sGRP}
    s_mul_i32 s76, s{sHW}, 15
    s_add_u32 s77, s76, 15
    s_cmp_eq_u32 s{sJ}, 7
    s_cselect_b32 s19, 17, 41
    s_mul_i32 s18, s18, s19""")
    if "nosame" in OPT: k("s_mov_b32 s18, 0")
    k.label("H_rst")
    k(f"""s_cmp_lt_u32 s76, 41
    s_cselect_b32 s78, s74, s75
    s_lshl_b32 s79, s76, 10
    s_add_u32 s78, s78, s79
    s_cmp_lt_u32 s76, s18""")
    k.br("scc1", "H_rp")
    k(f"buffer_store_dwordx4 v[8:11], v0, {WS}, s78 offen sc1")
    k.jmp("H_rn")
    k.label("H_rp")
    k(f"buffer_store_dwordx4 v[8:11], v0, {WS}, s78 offen")
    k.label("H_rn")
    k(f"""s_add_u32 s76, s76, 1
    s_cmp_lt_u32 s76, s77""")
    k.br("scc1", "H_rst")
    k(f"""s_lshr_b32 s75, s2, 3
    s_mul_i32 s75, s75, 3
    s_add_u32 s75, s75, s{sHW}
    s_mul_i32 s75, s75, {54*128}
    v_lshlrev_b32 v2, 3, v0
    s_mov_b32 exec_hi, 0x3fffff
    buffer_load_dword v4, v2, {RWO}, s75 offen
    s_mov_b64 exec, -1
    s_cmp_lg_u32 s{sHW}, 2""")
    k.br("scc1", "H_r2")
    k(f"""buffer_load_dwordx4 v[12:15], v0, {RWR}, 0 offen
    buffer_load_dwordx4 v[16:19], v0, {RWR}, 0 offen offset:1024
    buffer_load_dwordx4 v[20:23], v0, {RWR}, s{sJ144} offen""")
    for i in range(4): k(f"v_mov_b32 v{24+i}, 0")
    k(f"""s_add_u32 s76, s9, {FLS}
    s_lshl_b32 s74, s{sG}, 9
    s_add_u32 s74, s74, {W_KEY}
    s_add_u32 s75, s74, {KEYS}
    s_mov_b64 exec, 0xff
    buffer_store_dwordx4 v[24:27], v0, {WS}, s76 offen sc1
    s_cmp_lg_u32 s{sJ}, 7""")
    k.br("scc1", "H3k")
    k(f"""s_mov_b32 exec_lo, -1
    buffer_store_dwordx4 v[24:27], v0, {WS}, s74 offen sc1
    buffer_store_dwordx4 v[24:27], v0, {WS}, s75 offen sc1""")
    k.label("H3k")
    k(f"""s_mov_b64 exec, -1
    v_mov_b32 v6, 0x3f803f80
    v_mov_b32 v7, 0
    s_waitcnt vmcnt(0)""")
    for i in range(8): k(f"v_dot2c_f32_bf16 v7, v{12+i}, v6")
    red16(k, "v_add_f32", 7)
    redx(k, "v_add_f32", [7], [5])
    k(f"""v_add_u32 v2, {L_WRS}, v0
    v_mov_b32 v3, {L_SW}
    s_mov_b64 exec, 0x1ff
    ds_write_b128 v2, v[20:23]
    ds_write_b32 v3, v7
    s_mov_b64 exec, -1""")
    k.label("H_r2")
    k("s_waitcnt vmcnt(0)")
    k.post(RST1, BIG, 5, sHW)
    k(f"s_cmp_lg_u32 s{sHW}, 0"); k.br("scc1", "H_r3")
    k.wait(rng(RST1, 3), 1, 5, sleep=4)
    k(f"""v_add_u32 v28, {FLC}, v28
    s_mov_b64 exec, 1
    buffer_store_dword v28, off, {WS}, s9 offset:32 sc1
    s_mov_b64 exec, -1""")
    k.label("H_r3")
    k(f"s_cmp_ge_u32 s{sG}, 24"); k.br("scc1", "H_free")
    FW, FD = 48, 120
    k(f"""s_and_b32 s{sU}, s2, 7
    s_mul_i32 s{sU}, s{sU}, 24
    s_lshr_b32 s74, s2, 3
    s_add_u32 s{sU}, s{sU}, s74
    s_mul_i32 s74, s{sU}, 48
    s_mul_i32 s75, s{sHW}, {192*9216}
    s_add_u32 s74, s74, s75
    s_lshl_b32 s75, s{sHW}, 10
    s_add_u32 s75, s75, {L_FT}
    v_lshrrev_b32 v2, 8, v0
    v_bfe_u32 v3, v0, 6, 2
    v_lshl_add_u32 v2, v2, 3, v3
    v_mul_u32_u24 v2, 9216, v2
    v_and_b32 v3, 0x30, v0
    v_add_u32 v2, v2, v3
    v_lshrrev_b32 v3, 1, v0
    v_and_b32 v4, 0x1e0, v3
    v_add_u32 v4, s75, v4
    v_add_u32 v3, s75, v3""")
    def gl(st):
        k("s_mov_b32 exec_lo, 0x77777777\ns_mov_b32 exec_hi, 0x77777777")
        for m in range(4):
            if m == 2: k(f"s_add_u32 s76, s74, {4*9216}")
            k(f"buffer_load_dwordx4 {v(8+16*(st&1)+4*m,4)}, v2, {(RWG, RWU)[m & 1]}, s{74 if m < 2 else 76} offen")
        k(f"s_add_u32 s74, s74, {32*9216}")
    gl(0)
    for st in range(6):
        if st < 5: gl(st + 1)
        k(f"s_waitcnt vmcnt({4 if st < 5 else 0})")
        for t in range(3):
            k(f"s_mov_b32 exec_lo, {hex(0x11111111 << t)}\ns_mov_b32 exec_hi, {hex(0x11111111 << t)}")
            for m in range(4): k(f"ds_write_b128 v4, {v(8+16*(st&1)+4*m,4)} offset:{512*(m >> 1) + 16*(m & 1)}")
            k("s_mov_b64 exec, -1")
            k(TR(FW + 12 * st + 4 * t, 3, 0))
            if t != 0: k("s_waitcnt lgkmcnt(0)")
    k(f"""s_mul_i32 s74, s{sU}, {24*ROWB}
    s_mul_i32 s76, s{sHW}, 384
    s_add_u32 s74, s74, s76
    v_lshrrev_b32 v2, 7, v0
    v_mul_u32_u24 v2, {ROWB}, v2
    v_and_b32 v4, 0x70, v0
    v_add_u32 v2, v2, v4
    v_and_b32 v4, 0x210, v0
    v_bfe_u32 v5, v0, 7, 2
    v_lshl_add_u32 v4, v5, 5, v4
    v_add_u32 v4, s75, v4""")
    for x in range(3):
        for a in range(3):
            k(f"s_add_u32 s76, s74, {8*a*ROWB}\nbuffer_load_dwordx4 {v(8+12*x+4*a,4)}, v2, {RWD}, s76 offen offset:{128*x}")
    for x in range(3):
        k(f"s_waitcnt vmcnt({6-3*x})")
        for h in range(4):
            k(f"s_mov_b32 exec_lo, {hex(0x03030303 << 2*h)}\ns_mov_b32 exec_hi, {hex(0x03030303 << 2*h)}")
            for a in range(3): k(f"ds_write_b128 v4, {v(8+12*x+4*a,4)} offset:{128*a}")
            k("s_mov_b64 exec, -1")
            k(TR(FD + 16 * x + 4 * h, 3, 0))
            if h & 1: k("s_waitcnt lgkmcnt(0)")
    k("s_mov_b32 exec_lo, 0\ns_mov_b32 exec_hi, 0xffff0000")
    for i in range(48): k(f"v_mov_b32 v{FD+i}, 0")
    k("s_mov_b64 exec, -1")
    k(f"""v_lshrrev_b32 v2, 8, v0
    v_lshlrev_b32 v6, 6, v2
    v_lshlrev_b32 v2, 4, v2
    v_add_u32 v3, s75, v2
    v_min_u32 v4, 128, v6
    v_bfe_u32 v5, v0, 4, 3
    v_lshl_add_u32 v4, v5, 2, v4
    v_add_u32 v4, {L_FT}, v4
    v_sub_u32 v5, v0, v6""")
    k.ts(2)
    k.label("F_layer")
    k(f"s_lshl_b32 s74, s{sL}, 4\ns_add_u32 s74, s74, 11\ns_lshl_b32 s75, {1 << (SEL0-32)}, s{sL}")
    k.wait(rng(PROG, 8), "s74", 7, sleep=8)
    k.wait(None, 1, 7, smask=75, hi=True)
    read_sel(k, 7, sL)
    cand_base(k, 74)
    k(f"s_mul_i32 s75, s{sHW}, 384\ns_add_u32 s74, s74, s75")
    k.ts(3)
    k.label("F_row")
    for st in range(6): k(f"buffer_load_dwordx4 {v(8+4*st,4)}, v2, {WS}, s74 offen offset:{64*st} sc1")
    k(f"""s_and_b32 s75, s73, 0xffff0000
    s_ashr_i32 s76, s75, 31
    s_not_b32 s76, s76
    s_or_b32 s76, s76, 0x80000000
    s_xor_b32 s75, s75, s76
    s_and_b32 s75, s75, 0xffff0000
    v_mov_b32 v45, {f32bits(-math.log2(math.e))}
    v_mul_f32 v44, s75, v45
    v_exp_f32 v44, v44
    s_add_u32 s18, s{sL}, 1
    s_waitcnt vmcnt(0)""")
    k.umax(7, rng(8, 24))
    k("v_cmp_eq_u32 vcc, -1, v7")
    k.retry("F_row")
    k.ts(4)
    for st in range(6):
        for t in range(3): k(MF16(32 + 4 * t, FW + 12 * st + 4 * t, 8 + 4 * st, "0" if st == 0 else None))
    k(f"""v_add_f32 v44, 1.0, v44
    s_mul_i32 s74, s{sL}, {YPS}
    s_mul_i32 s75, s{sU}, 2304
    s_add_u32 s74, s74, s75
    s_mul_i32 s75, s{sHW}, 768
    s_add_u32 s74, s74, s75
    s_add_u32 s74, s74, {W_YP}
    s_mov_b32 s76, 0x00010001
    s_mov_b32 s77, 0x00010001
    s_mov_b64 exec, s[76:77]""")
    for t in range(3): k(f"ds_write_b128 v3, {v(32+4*t,4)} offset:{64*t}")
    k.post(FRD, "s18", 7, sHW)
    k.wait(rng(FRD, 3), "s18", 7)
    for w in range(3): k(f"ds_read2st64_b32 {v(8+2*w,2)}, v4 offset0:{4*w} offset1:{4*w}" if False else f"ds_read2_b32 {v(8+2*w,2)}, v4 offset0:0 offset1:8" if w == 0 else f"v_add_u32 v6, {1024*w}, v4\nds_read2_b32 {v(8+2*w,2)}, v6 offset0:0 offset1:8")
    k(f"""s_waitcnt lgkmcnt(0)
    v_add_f32 v8, v8, v10
    v_add_f32 v9, v9, v11
    v_add_f32 v8, v8, v12
    v_add_f32 v9, v9, v13
    v_mul_f32 v10, v8, v45
    v_exp_f32 v10, v10
    v_mul_f32 v8, v8, v9
    v_fma_f32 v10, v10, v44, v44
    v_rcp_f32 v10, v10
    v_mul_f32 v8, v8, v10
    v_mov_b32_dpp v9, v8 quad_perm:[1,0,3,2] {DPP_ALL}
    v_cvt_pk_bf16_f32 v8, v8, v9""")
    for i in range(4): k(f"v_mov_b32_dpp v{12+i}, v8 row_newbcast:{2*i} {DPP_ALL}")
    for u in range(12):
        bt = 16 + 4 * (u & 1)
        for i in range(4): k(f"v_cndmask_b32 v{bt+i}, 0, v{12+i}, s[76:77]")
        k("s_lshl_b64 s[76:77], s[76:77], 1\ns_nop 0")
        k(MF16(24 + 4 * (u & 1), FD + 4 * u, bt, "0" if u < 2 else None))
    k("s_mov_b32 exec_lo, 0x0fff0fff\ns_mov_b32 exec_hi, 0x0fff0fff")
    for r in range(4): k(f"v_add_f32 v{24+r}, v{24+r}, v{28+r}")
    k(f"buffer_store_dwordx4 v[24:27], v5, {WS}, s74 offen sc1\ns_mov_b64 exec, -1")
    k.ts(5)
    k(f"s_cmp_lg_u32 s{sL}, 0"); k.br("scc1", "end")
    k.tscopy()
    k(f"s_mov_b32 s{sL}, 1")
    k.jmp("F_layer")
    k.label("H_free")
    k(f"s_cmp_ge_u32 s{sG}, 30"); k.br("scc1", "R_start")
    k(f"""s_sub_u32 s72, s{sG}, 24
    s_lshl_b32 s72, s72, 3
    s_add_u32 s72, s72, s{sJ}
    s_mul_i32 s{sU}, s72, 3
    s_add_u32 s{sU}, s{sU}, s{sHW}""")
    k(f"""s_mul_i32 s74, s{sU}, 1366
    s_lshr_b32 s74, s74, 14
    s_mul_i32 s75, s74, 12
    s_sub_u32 s75, s{sU}, s75
    s_lshr_b32 s76, s74, 2
    s_mul_i32 s76, s76, 12
    s_add_u32 s75, s75, s76
    s_lshl_b32 s75, s75, 2
    s_and_b32 s74, s74, 3
    s_add_u32 s9, s75, s74
    s_lshl_b32 s9, s9, 3
    v_mul_u32_u24 v6, 144, v0""")
    k.label("Z_layer")
    k(f"s_lshl_b32 s74, s{sL}, 4\ns_add_u32 s74, s74, 11\ns_lshl_b32 s75, {1 << (SEL0-32)}, s{sL}")
    k.wait(rng(PROG, 8), "s74", 5, sleep=8)
    k.wait(None, 1, 5, smask=75, hi=True)
    read_sel(k, 5, sL)
    cand_base(k, 75)
    k(f"""s_add_u32 s75, s75, s9
    s_lshl_b32 s74, s{sU}, 4
    s_mul_i32 s76, s{sL}, {YPS}
    s_add_u32 s74, s74, s76
    s_add_u32 s74, s74, {W_YP}
    s_add_u32 s76, s74, {64*2304}
    s_add_u32 s77, s74, {128*2304}""")
    k.label("Z_x")
    k(f"""buffer_load_dwordx2 v[34:35], off, {WS}, s75 sc1
    buffer_load_dwordx2 v[36:37], off, {WS}, s75 offset:1152 sc1
    s_waitcnt vmcnt(0)""")
    k.umax(5, rng(34, 4))
    k("v_cmp_eq_u32 vcc, -1, v5")
    k.retry("Z_x", 1)
    for h in range(2):
        k(f"""v_lshlrev_b32 v{38+2*h}, 16, v{34+h}
        v_and_b32 v{39+2*h}, 0xffff0000, v{34+h}
        v_lshlrev_b32 v2, 16, v{36+h}
        v_and_b32 v3, 0xffff0000, v{36+h}
        v_add_f32 v{38+2*h}, v{38+2*h}, v2
        v_add_f32 v{39+2*h}, v{39+2*h}, v3""")
    k.ts(3)
    if "zsleep" in OPT: k("s_sleep 20")
    k.label("Z_y")
    for i in range(3): k(f"buffer_load_dwordx4 {v(60+4*i,4)}, v6, {WS}, s{(74, 76, 77)[i]} offen sc1")
    k("s_waitcnt vmcnt(0)")
    k.umax(5, rng(60, 12))
    k("v_cmp_eq_u32 vcc, -1, v5")
    k.retry("Z_y", 1)
    k.ts(4)
    for i in range(1, 3):
        for r in range(4): k(f"v_add_f32 v{60+r}, v{60+r}, v{60+4*i+r}")
    red16(k, "v_add_f32", 60, 61, 62, 63)
    redx(k, "v_add_f32", rng(60, 4), rng(64, 4))
    for r in range(4): k(f"v_add_f32 v{38+r}, v{38+r}, v{60+r}")
    k(f"""v_cvt_pk_bf16_f32 v36, v38, v39
    v_cvt_pk_bf16_f32 v37, v40, v41
    s_mov_b32 s74, s9
    s_mov_b64 exec, 1
    s_cmp_eq_u32 s{sL}, 0""")
    k.br("scc1", "Z_l0")
    k(f"""s_mul_i32 s75, s{sSEL}, {ROWB}
    s_add_u32 s74, s74, s75
    buffer_store_dwordx2 v[36:37], off, {ROUT}, s74 sc1""")
    k.jmp("end")
    k.label("Z_l0")
    k(f"""s_add_u32 s74, s74, {W_X2R}
    buffer_store_dwordx2 v[36:37], off, {WS}, s74 sc1
    s_mov_b64 exec, -1
    s_mov_b32 s{sL}, 1""")
    k.ts(5)
    k("s_cmp_ge_u32 s72, 32"); k.br("scc1", "Z_next")
    k(f"s_cmp_eq_u32 s{sHW}, 1"); k.br("scc1", "C_start")
    k(f"s_cmp_eq_u32 s{sHW}, 2"); k.br("scc1", "Z_next")
    k.wait([FULL], 19, 5, sleep=2)
    k(f"""v_bfe_u32 v2, v0, 4, 5
    v_mul_u32_u24 v2, 36, v2
    v_lshrrev_b32 v3, 9, v0
    v_lshl_add_u32 v3, v3, 4, v2
    v_lshrrev_b32 v4, 2, v0
    v_min_u32 v4, 20, v4
    s_mov_b32 s74, {W_QS}
    s_mov_b32 s75, {W_PF}
    s_lshr_b32 s76, s{sSEL}, 6
    s_cmp_eq_u32 s76, s72
    s_cselect_b32 s75, s75, s74""")
    k.label("Q_poll")
    k(f"""buffer_load_dwordx4 v[8:11], v3, {WS}, s74 offen sc1
    buffer_load_dword v12, v2, {WS}, s74 offen offset:32 sc1
    buffer_load_dword v13, v4, {WS}, s75 offen sc1
    s_waitcnt vmcnt(0)""")
    k.umax(5, rng(8, 6))
    k("v_cmp_eq_u32 vcc, -1, v5")
    k.retry("Q_poll", 4)
    k.ts(6)
    k(f"""v_mov_b32 v13, 0
    s_mov_b32 exec_lo, 0
    v_mov_b32 v12, 0
    s_mov_b32 exec_lo, -1
    s_lshl_b32 s18, s72, 1
    s_add_u32 s19, s18, 2
    s_mov_b32 s73, {KVS}""")
    safe_tiles(k, 8, 12, 60, 76, 16, 20, 28, 30, 32, 34, 35, 18, 19, 73)
    k(f"""s_mul_i32 s74, s72, 3072
    s_add_u32 s74, s74, {W_SP}
    v_mov_b32 v71, v30""")
    for i in range(3): k(f"buffer_store_dwordx4 {v(60+4*i,4)}, v0, {WS}, s74 offen offset:{1024*i} sc1")
    k.ts(7)
    k.jmp("Z_next")
    k.label("C_start")
    k(f"""v_bfe_u32 v2, v0, 4, 5
    v_mul_u32_u24 v2, 3072, v2
    v_and_b32 v3, 0x200, v0
    v_add_u32 v2, v2, v3
    s_lshl_b32 s74, s72, 4
    s_add_u32 s74, s74, {W_SP}""")
    k.label("C_poll")
    for i in range(3): k(f"buffer_load_dwordx4 {v(8+4*i,4)}, v2, {WS}, s74 offen offset:{1024*i} sc1")
    k("s_waitcnt vmcnt(0)")
    k.umax(5, rng(8, 12))
    k("v_cmp_eq_u32 vcc, -1, v5")
    k.retry("C_poll", 8)
    k.ts(6)
    k("v_mov_b32 v20, v19")
    red16(k, "v_max_f32", 20)
    redx(k, "v_max_f32", [20], [21])
    k("v_sub_f32 v20, v19, v20\nv_exp_f32 v20, v20")
    for i in range(11): k(f"v_mul_f32 v{8+i}, v{8+i}, v20")
    red16(k, "v_add_f32", *rng(8, 11))
    for i in range(11): k(f"v_mov_b32 v{24+i}, v{8+i}")
    for i in range(11): k(f"v_permlane16_swap_b32 v{8+i}, v{24+i}")
    for i in range(11): k(f"v_add_f32 v{8+i}, v{8+i}, v{24+i}")
    k("v_mov_b32 v20, v18\nv_permlane32_swap_b32 v18, v20\nv_rcp_f32 v18, v18")
    for i in range(10): k(f"v_mul_f32 v{8+i}, v{8+i}, v18")
    for i in range(5): k(f"v_cvt_pk_bf16_f32 v{24+i}, v{8+2*i}, v{9+2*i}")
    k(f"""s_lshr_b32 s75, s72, 2
    s_mul_i32 s75, s75, 2304
    s_add_u32 s74, s75, {W_OS}
    s_and_b32 s75, s72, 3
    s_lshl_b32 s76, s75, 9
    s_add_u32 s76, s76, s74
    s_lshl_b32 s75, s75, 2
    s_add_u32 s75, s75, s74
    v_lshrrev_b32 v3, 1, v3
    s_mov_b32 exec_lo, 1
    s_mov_b32 exec_hi, 1
    buffer_store_dwordx4 v[24:27], v3, {WS}, s76 offen sc1
    s_mov_b32 exec_hi, 0
    buffer_store_dword v28, off, {WS}, s75 offset:2048 sc1
    s_mov_b64 exec, -1""")
    k.ts(7)
    k.label("Z_next")
    k.tscopy()
    k.jmp("Z_layer")
    k.label("R_start")
    k(f"""s_sub_u32 s{sU}, 4, s{sHW}
    s_cmp_eq_u32 s{sG}, 30
    s_cselect_b32 s{sU}, s{sHW}, s{sU}
    s_cselect_b32 s74, 7, 2
    s_cmp_eq_u32 s{sHW}, s74""")
    k.br("scc1", "end")
    k(f"s_cmp_eq_u32 s{sU}, 4"); k.br("scc1", "R_have")
    tr_addr(k, 2, 0, 5)
    k(f"s_lshl_b32 s74, s{sU}, 5\nv_xor_b32 v2, s74, v2")
    for st in range(3):
        for i in range(6): k(TR(HW + 24 * st + 4 * i, 2, 4096 * i))
        k(f"v_add_u32 v2, {6*4096}, v2\ns_waitcnt lgkmcnt(0)")
    k(f"""v_lshrrev_b32 v2, 8, v0
    v_lshlrev_b32 v2, 4, v2
    s_lshl_b32 s74, s{sU}, 6
    s_add_u32 s74, s74, {L_CS}
    v_add_u32 v2, s74, v2
    ds_read_b128 {v(HCS,4)}, v2""")
    k.label("R_have")
    k.wait([FULL], 19, 5, sleep=8)
    read_sel(k, 5)
    k(f"s_mov_b32 s74, {W_X2R}")
    rowload(k, 4, 74, 4)
    k.ts(4)
    rowdot(k)
    k(f"""v_lshrrev_b32 v3, 8, v0
    v_mov_b32 v6, {f32bits(QSCALE)}
    s_cmp_eq_u32 s{sU}, 4
    s_cselect_b32 s75, 0, 0x00010001
    s_mov_b32 exec_hi, s75""")
    for r in range(4): k(f"v_mul_f32 v{24+r}, v{24+r}, v6")
    k(f"""s_mov_b32 exec_hi, -1
    v_cvt_pk_bf16_f32 v8, v24, v25
    v_cvt_pk_bf16_f32 v9, v26, v27
    v_lshlrev_b32 v2, 3, v3
    s_lshl_b32 s74, s{sU}, 5
    s_add_u32 s74, s74, s{sJ144}
    s_add_u32 s74, s74, {W_QS}
    s_mov_b32 exec_lo, 0x00010001
    s_mov_b32 exec_hi, s75
    buffer_store_dwordx2 v[8:9], v2, {WS}, s74 offen sc1
    s_cmp_lg_u32 s{sU}, 4""")
    k.br("scc1", "end")
    k(f"s_cmp_ge_u32 s{sJ}, 6"); k.br("scc1", "end")
    k(f"""s_lshr_b32 s77, s{sSEL}, 7
    s_mul_i32 s77, s77, {QUAD}
    s_add_u32 s77, s77, {KVS}
    s_bfe_u32 s78, s{sSEL}, 0x20005
    s_and_b32 s18, s{sSEL}, 31
    s_mov_b32 exec_lo, 0
    s_mov_b32 exec_hi, 0x00010001
    v_and_b32 v3, 1, v3
    s_cmp_eq_u32 s{sJ}, 4""")
    k.br("scc1", "R_kb")
    k(f"s_cmp_ge_u32 s{sJ}, 2"); k.br("scc1", "R_v")
    k(f"""s_lshl_b32 s78, s78, 10
    s_add_u32 s77, s77, s78
    s_lshl_b32 s78, s{sJ}, 9
    s_add_u32 s77, s77, s78
    s_lshl_b32 s78, s18, 4
    s_add_u32 s77, s77, s78
    v_lshlrev_b32 v3, 3, v3
    buffer_store_dwordx2 v[8:9], v3, {WS}, s77 offen sc1""")
    k.jmp("R_done")
    k.label("R_kb")
    k(f"""s_lshl_b32 s78, s78, 7
    s_add_u32 s77, s77, s78
    s_lshl_b32 s78, s18, 2
    s_add_u32 s77, s77, s78
    s_add_u32 s77, s77, 8960
    s_mov_b32 exec_hi, 0x00010000
    buffer_store_dword v9, off, {WS}, s77 sc1""")
    k.jmp("R_done")
    k.label("R_v")
    k(f"""s_mul_i32 s78, s78, 1216
    s_add_u32 s77, s77, s78
    s_lshr_b32 s78, s18, 4
    s_mul_i32 s78, s78, 608
    s_add_u32 s77, s77, s78
    s_bfe_u32 s78, s18, 0x10002
    s_mul_i32 s78, s78, 304
    s_add_u32 s77, s77, s78
    s_and_b32 s78, s18, 8
    s_add_u32 s77, s77, s78
    s_and_b32 s78, s18, 3
    s_lshl_b32 s78, s78, 1
    s_add_u32 s77, s77, s78
    s_add_u32 s77, s77, 4096
    s_cmp_eq_u32 s{sJ}, 5""")
    k.br("scc1", "R_v5")
    k(f"""s_and_b32 s78, s{sJ}, 1
    s_lshl_b32 s78, s78, 6
    s_add_u32 s77, s77, s78
    v_lshlrev_b32 v3, 7, v3
    buffer_store_short v8, v3, {WS}, s77 offen sc1
    buffer_store_short_d16_hi v8, v3, {WS}, s77 offen offset:16 sc1
    buffer_store_short v9, v3, {WS}, s77 offen offset:32 sc1
    buffer_store_short_d16_hi v9, v3, {WS}, s77 offen offset:48 sc1""")
    k.jmp("R_done")
    k.label("R_v5")
    k(f"""s_mov_b32 exec_hi, 0x00010000
    buffer_store_short v9, off, {WS}, s77 offset:256 sc1
    buffer_store_short_d16_hi v9, off, {WS}, s77 offset:272 sc1""")
    k.label("R_done")
    k(f"""s_lshl_b32 s74, s{sJ}, 2
    s_add_u32 s74, s74, {W_PF}
    s_mov_b64 exec, 1
    v_mov_b32 v2, 1
    s_waitcnt vmcnt(0)
    buffer_store_dword v2, off, {WS}, s74 sc1""")
    k.ts(5)
    k.jmp("end")

NAME = "interleave_layers__grouped_kv_mqa__moe_arch_mod__prompt"
def build():
    k, late = build_kernel(NAME + "_kernel")
    role_B(k, late)
    role_H(k, late)
    role_Hw(k, late)
    for f in late: f()
    k.label("end")
    if Kern.TS:
        k(f"""s_waitcnt vmcnt(0) lgkmcnt(0)
        s_memrealtime s[100:101]
        s_getreg_b32 s74, hwreg(HW_REG_XCC_ID)
        s_getreg_b32 s75, hwreg(HW_REG_HW_ID)
        s_mul_i32 s76, s2, 12
        s_add_u32 s76, s76, s{sW}
        s_lshl_b32 s76, s76, 7
        s_mov_b64 exec, 1
        s_waitcnt lgkmcnt(0)""")
        for q in range(4):
            for i in range(4): k(f"v_mov_b32 v{8+4*q+i}, s{80+4*q+i}")
            k(f"buffer_store_dwordx4 {v(8+4*q,4)}, off, s[96:99], s76 offset:{16*q}")
        k(f"v_mov_b32 v24, s100\nv_mov_b32 v25, s74\nv_mov_b32 v26, s75\nv_mov_b32 v27, s{sBUD}")
        k("buffer_store_dwordx4 v[24:27], off, s[96:99], s76 offset:64")
        k("v_mov_b32 v28, s32\nv_mov_b32 v29, s33\nv_mov_b32 v30, s30\nv_mov_b32 v31, s31")
        k("buffer_store_dwordx4 v[28:31], off, s[96:99], s76 offset:80")
    k.label("exit")
    k("s_endpgm")
    n = k.pad(verbose=(lambda i, t, w: print(f"pad {w}: {t}", file=sys.stderr)) if "padv" in OPT else None)
    hdr = open(f"cdna_kernels/{NAME}.s.ref").read().split("\n")
    hdr = [l for l in hdr if l.startswith(";") and "@launch" not in l and "Override" not in l and "grid=ceil" not in l]
    out = "\n".join(hdr) + "\n; @launch grid=(256,1,1) block=(768,1,1) lds=163840\n"
    out += '.amdgcn_target "amdgcn-amd-amdhsa--gfx950"\n.text\n' + k.body() + '.section .rodata,"a"\n' + k.desc()
    return out

if __name__ == "__main__":
    import argparse
    ap = argparse.ArgumentParser()
    ap.add_argument("-o", default="p.s")
    ap.add_argument("--ts", action="store_true")
    ap.add_argument("--opt", default="")
    ap.add_argument("--budget", type=int, default=BUDGET)
    a = ap.parse_args()
    Kern.TS = a.ts
    OPT.update(a.opt.split(","))
    BUDGET = a.budget
    open(a.o, "w").write(build())
```
